```python
import torch

def _softmax(x, axis=-1):
    return torch.softmax(x, dim=axis)
def _gelu(x):
    return torch.nn.functional.gelu(x, approximate="tanh")
def _silu(x):
    return torch.nn.functional.silu(x)
def _sigmoid(x):
    return torch.sigmoid(x)
def _layernorm(x, axis=-1, eps=1e-5):
    m = x.mean(dim=axis, keepdim=True)
    v = x.var(dim=axis, keepdim=True, unbiased=False)
    return (x - m) / torch.sqrt(v + eps)
def _scatter_add(tgt, idx, src, axis=0):
    return tgt.clone().index_add_(axis, idx, src)
def _segment_sum(src, seg, n):
    out = torch.zeros((n,) + src.shape[1:], dtype=src.dtype)
    return out.index_add_(0, seg, src)
def _pad(x, pw):
    flat = tuple(v for pair in reversed(pw) for v in pair)
    return torch.nn.functional.pad(x, flat)

kernel_name = 'sequential_preLN__softmax_full_mha__dense_activation_gelu__prompt'

def setup_inputs():

    _w = (lambda a: (lambda t: t.to(torch.bfloat16) if t.is_floating_point() else t)(torch.as_tensor(a)))
    def _A_setup():
        B, S, D = 1, 2048, 1024
        return {
            "x": _w((lambda *s: torch.randn(*s, dtype=torch.bfloat16) * 0.05)(B, S, D)),
            "wqkv": _w((lambda *s: torch.randn(*s, dtype=torch.bfloat16) * 0.05)(D, 3 * D)),
            "wo": _w((lambda *s: torch.randn(*s, dtype=torch.bfloat16) * 0.05)(D, D)),
        }
    _A_in = _A_setup()

    def _B_setup():
        B, S, D, F = 1, 2048, 1024, 3584
        return {
            "x": _w((lambda *s: torch.randn(*s, dtype=torch.bfloat16) * 0.05)(B, S, D)),
            "w1": _w((lambda *s: torch.randn(*s, dtype=torch.bfloat16) * 3.2)(D, F) * (D ** -0.5)),
            "b1": _w((lambda *s: torch.randn(*s, dtype=torch.bfloat16) * 3.2)(F) * 0.01),
            "w2": _w((lambda *s: torch.randn(*s, dtype=torch.bfloat16) * 0.4)(F, D) * (F ** -0.5)),
            "b2": _w((lambda *s: torch.randn(*s, dtype=torch.bfloat16) * 0.4)(D) * 0.01),
        }
    _B_in = _B_setup()

    return {
        "A_x": _A_in["x"],
        "A_wqkv": _A_in["wqkv"],
        "A_wo": _A_in["wo"],
        "B_x": _B_in["x"],
        "B_w1": _B_in["w1"],
        "B_b1": _B_in["b1"],
        "B_w2": _B_in["w2"],
        "B_b2": _B_in["b2"],
    }

def reference(A_x, A_wqkv, A_wo, B_x, B_w1, B_b1, B_w2, B_b2):
    def _A_ref(x, wqkv, wo):
        B, S, D = x.shape
        H = 32; Dh = D // H
        qkv = (lambda x, *d: x.permute(*d))((x @ wqkv).reshape(B, S, 3, H, Dh), 2, 0, 3, 1, 4)
        q, k, v = qkv[0], qkv[1], qkv[2]
        scale = Dh ** -0.5
        scores = torch.einsum("bhqd,bhkd->bhqk", q, k) * scale
        p = _softmax(scores, axis=-1)
        o = torch.einsum("bhqk,bhkd->bhqd", p, v)
        return (lambda x, *d: x.permute(*d))(o, 0, 2, 1, 3).reshape(B, S, D) @ wo

    def _B_ref(x, w1, b1, w2, b2):
        h = torch.einsum("bsd,df->bsf", x, w1) + b1
        h = _gelu(h)
        return torch.einsum("bsf,fd->bsd", h, w2) + b2

    x = A_x
    h = x + _A_ref(_layernorm(x, axis=-1), A_wqkv, A_wo)
    h2 = h + _B_ref(_layernorm(h, axis=-1), B_w1, B_b1, B_w2, B_b2)
    return h2
```

```python
S=2048; D=1024; F=3584; H=32; DH=32
MB=1<<20
WS_XN=0*MB; WS_Q=4*MB; WS_KV=8*MB; WS_O=16*MB; WS_H=20*MB; WS_G=24*MB
WS_ST=40*MB
WS_CS=41*MB
KA_X,KA_WQKV,KA_WO,KA_BX,KA_W1,KA_B1,KA_W2,KA_B2,KA_OUT,KA_DBG,KA_WS=[8*i for i in range(11)]

class A:
    def __init__(s): s.l=[]
    def __call__(s,t):
        for x in t.strip('\n').split('\n'):
            x=x.strip()
            if not x: continue
            s.l.append(x if x.endswith(':') else '  '+x)
    def ext(s,ls):
        for x in ls: s(x)
    def txt(s): return '\n'.join(s.l)+'\n'

def vr(b,n=1): return f"v{b}" if n==1 else f"v[{b}:{b+n-1}]"
def sr(b,n=1): return f"s{b}" if n==1 else f"s[{b}:{b+n-1}]"
def mf16(d,a,b,c=None):
    c=vr(d,4) if c is None else c
    return f"v_mfma_f32_16x16x32_bf16 {vr(d,4)}, {vr(a,4)}, {vr(b,4)}, {c}"
def mf32(d,a,b,c=None):
    c=vr(d,16) if c is None else c
    return f"v_mfma_f32_32x32x16_bf16 {vr(d,16)}, {vr(a,4)}, {vr(b,4)}, {c}"
def srd(a,dst,base,off,size):
    if off:
        a(f"s_add_u32 s{dst}, s{base}, {hex(off)}\ns_addc_u32 s{dst+1}, s{base+1}, 0")
    else:
        a(f"s_mov_b32 s{dst}, s{base}\ns_mov_b32 s{dst+1}, s{base+1}")
    a(f"s_mov_b32 s{dst+2}, {hex(size)}\ns_mov_b32 s{dst+3}, 0x20000")
def interleave(mains, fills, start=0, per=1):
    out=[]; j=0
    for i,m in enumerate(mains):
        out.append(m)
        if i>=start:
            out+=fills[j:j+per]; j+=per
    return out+fills[j:]
def khead(name):
    return f".globl {name}\n.p2align 8\n.type {name},@function\n{name}:\n"
def kdesc(name,vg,sg=96):
    acc=(vg+3)//4*4
    return f""".p2align 6
.amdhsa_kernel {name}
  .amdhsa_next_free_vgpr {vg}
  .amdhsa_next_free_sgpr {sg}
  .amdhsa_accum_offset {acc}
  .amdhsa_group_segment_fixed_size 0
  .amdhsa_kernarg_size 88
  .amdhsa_user_sgpr_count 2
  .amdhsa_user_sgpr_kernarg_segment_ptr 1
  .amdhsa_system_sgpr_workgroup_id_x 1
.end_amdhsa_kernel
"""
```

```python
from common import *
import struct
def f2u(x): return hex(struct.unpack('<I',struct.pack('<f',x))[0])

def gemm(name, kind):
    cfg=dict(
      qkv =dict(BN=192,WM=2,TB=4,NF=6,KP=1,NS=4,K=1024,ldw=6144,wka=KA_WQKV,act=WS_XN,perm='nat',xr=8),
      wo  =dict(BN=64, WM=4,TB=2,NF=4,KP=2,NS=3,K=1024,ldw=2048,wka=KA_WO,  act=WS_O, perm='att',xr=4),
      ffn1=dict(BN=224,WM=2,TB=4,NF=7,KP=1,NS=3,K=1024,ldw=7168,wka=KA_W1,  act=WS_H, perm='id', xr=8),
      ffn2=dict(BN=64, WM=4,TB=2,NF=4,KP=2,NS=3,K=3584,ldw=2048,wka=KA_W2,  act=WS_G, perm='id', xr=4),
    )[kind]
    BN,WM,TB,NF,KP,NS,K,ldw=[cfg[k] for k in 'BN WM TB NF KP NS K ldw'.split()]
    KSS=2*KP
    KS=K//32; nst=KS//KSS
    CB=BN//32
    ACT_B=8*KSS*1024
    W_B=KSS*CB*2048
    STG=ACT_B+W_B
    lds=STG*NS
    a=A()
    a(f"""s_cmp_ge_u32 s2, 256
s_cbranch_scc1 {name}_end
s_load_dwordx2 s[4:5], s[0:1], {KA_WS}
s_load_dwordx2 s[6:7], s[0:1], {cfg['wka']}""")
    if kind=='wo': a(f"s_load_dwordx2 s[40:41], s[0:1], {KA_X}")
    if kind=='ffn1': a(f"s_load_dwordx2 s[40:41], s[0:1], {KA_B1}")
    if kind=='ffn2': a(f"s_load_dwordx4 s[40:43], s[0:1], {KA_B2}")
    xr=cfg['xr']; lx={8:3,4:2}[xr]; nxr=16//xr; lnx={2:1,4:2}[nxr]; xc=32//xr
    a(f"""v_lshrrev_b32 v1, 6, v0
v_and_b32 v0, 63, v0
s_and_b32 s24, s2, 7
v_readfirstlane_b32 s8, v1
s_lshr_b32 s25, s2, 3
s_and_b32 s26, s24, {nxr-1}
s_lshl_b32 s26, s26, {lx}
s_and_b32 s9, s25, {xr-1}
s_add_u32 s9, s9, s26
s_lshr_b32 s26, s24, {lnx}
s_mul_i32 s26, s26, {xc}
s_lshr_b32 s10, s25, {lx}
s_add_u32 s10, s10, s26
s_cmp_lt_u32 s8, 4
s_cbranch_scc1 {name}_comp""")
    nA=8*KSS//4; nW=KSS*CB*2//4;
    assert (KSS*CB*2)%4==0 or True
    totW=KSS*CB*2; assert totW%4==0, totW
    n=nA+nW
    a("s_sub_u32 s8, s8, 4")
    a(f"""s_lshl_b32 s24, s9, 3
s_lshl_b32 s25, s8, 1
s_add_u32 s24, s24, s25
s_mul_i32 s24, s24, {KS*1024}
v_lshl_add_u32 v2, v0, 4, s24
v_add_u32 v3, {KS*1024}, v2""")
    a("""v_lshrrev_b32 v4, 4, v0
v_bfe_u32 v5, v0, 2, 2
v_and_b32 v6, 1, v4
v_and_b32 v7, 3, v0
v_lshlrev_b32 v8, 1, v6
v_xor_b32 v7, v7, v8""")
    p=cfg['perm']
    if p=='id':   bmul=16; a("v_lshl_add_u32 v9, v4, 2, v5")
    if p=='nat':  bmul=4;  a("v_lshl_add_u32 v9, v4, 3, v5")
    if p=='att':  bmul=8;  a("v_lshrrev_b32 v8, 1, v4\nv_lshlrev_b32 v8, 4, v8\nv_lshl_add_u32 v9, v6, 2, v5\nv_add_u32 v9, v9, v8")
    a(f"""s_movk_i32 s24, {ldw}
v_mul_lo_u32 v9, v9, s24
v_lshl_add_u32 v9, v7, 4, v9""")
    colb = 128 if kind=='qkv' else BN*2
    a(f"s_mul_i32 s21, s10, {colb}\ns_mov_b32 s20, 0")
    for j in range(nW):
        a(f"s_mul_i32 s24, s8, {nW}\ns_add_u32 s24, s24, {j}\ns_and_b32 s25, s24, 1\ns_lshr_b32 s24, s24, 1")
        a(f"s_mul_i32 s26, s24, {(65536+CB-1)//CB}\ns_lshr_b32 s26, s26, 16\ns_mul_i32 s27, s26, {CB}\ns_sub_u32 s24, s24, s27")
        a(f"s_mul_i32 s25, s25, {bmul*ldw}\ns_mul_i32 s26, s26, {32*ldw}\ns_add_u32 s25, s25, s26")
        if kind=='qkv':
            a("s_cmp_ge_u32 s24, 3\ns_cselect_b32 s26, 3, 0\ns_cselect_b32 s27, 64, 0\ns_sub_u32 s24, s24, s26\ns_lshl_b32 s24, s24, 11\ns_add_u32 s24, s24, s27")
        else: a("s_lshl_b32 s24, s24, 6")
        a(f"s_add_u32 s24, s24, s25\nv_add_u32 v{10+j}, s24, v9")
    a(f"s_mul_i32 s44, s8, {2*KSS*1024}\ns_mul_i32 s45, s8, {nW*1024}\ns_add_u32 s45, s45, {ACT_B}\ns_waitcnt lgkmcnt(0)")
    srd(a,12,4,cfg['act'],128*KS*1024)
    srd(a,16,6,0,K*ldw)
    def issue():
        r=[]
        ad=[]; wd=[]
        for i in range(2):
            for ks in range(KSS):
                ad.append((f"s_add_u32 m0, s46, {i*KSS*1024}", f"buffer_load_dwordx4 v{2+i}, s[12:15], s20 offen offset:{ks*1024} lds"))
        for j in range(nW):
            wd.append((f"s_add_u32 m0, s47, {j*1024}", f"buffer_load_dwordx4 v{10+j}, s[16:19], s21 offen lds"))
        r.append("s_add_u32 s46, s22, s44\ns_add_u32 s47, s22, s45")
        for m,l in wd+ad: r.append(m+"\ns_nop 0\n"+l)
        r.append(f"s_add_u32 s20, s20, {KSS*1024}\ns_add_u32 s21, s21, {KSS*32*ldw}\ns_add_u32 s22, s22, {STG}\ns_cmp_eq_u32 s22, {lds}\ns_cselect_b32 s22, 0, s22")
        return r
    a(f"s_mov_b32 s22, 0\ns_mov_b32 s23, 0")
    a(f"{name}_ld:")
    a.ext(issue())
    a(f"""s_add_u32 s23, s23, 1
s_cmp_lt_u32 s23, {NS}
s_cbranch_scc1 {name}_ld
s_cmp_gt_u32 s23, {NS}
s_cbranch_scc1 {name}_ld1
s_waitcnt vmcnt({(NS-1)*n})
s_barrier
{name}_ld1:
s_waitcnt vmcnt({(NS-2)*n})
s_barrier
s_cmp_lt_u32 s23, {nst}
s_cbranch_scc1 {name}_ld""")
    for b in range(nst-NS+2, nst+1):
        rem=max(nst-1-b,0)
        a(f"s_waitcnt vmcnt({rem*n})\ns_barrier")
    a("s_endpgm")
    a(f"{name}_comp:")
    NACC=TB*NF*4; FR=KP*(TB+NF)*4
    ACC=16; F0=ACC+NACC; F1=F0+FR; VTOP=F1+FR
    acc=lambda tb,f: ACC+(tb*NF+f)*4
    fa=lambda Fb,kp,tb: Fb+kp*(TB+NF)*4+tb*4
    fw=lambda Fb,kp,f: Fb+kp*(TB+NF)*4+(TB+f)*4
    if WM==2: a("s_lshr_b32 s11, s8, 1\ns_and_b32 s3, s8, 1")
    else: a("s_mov_b32 s11, s8\ns_mov_b32 s3, 0")
    a(f"""v_and_b32 v1, 15, v0
v_lshrrev_b32 v2, 4, v0
s_mul_i32 s24, s11, {TB*KSS*1024}
v_lshl_add_u32 v3, v0, 4, s24
v_lshrrev_b32 v9, 2, v0
v_lshlrev_b32 v9, 6, v9
v_and_b32 v10, 3, v0
v_lshl_add_u32 v9, v10, 3, v9
v_and_b32 v10, 1, v2
v_lshlrev_b32 v10, 5, v10
v_add_u32 v9, v9, v10""")
    if NF%2==0:
        a(f"s_mul_i32 s24, s3, {NF//2*2048}\ns_add_u32 s24, s24, {ACT_B}\nv_add_u32 v4, s24, v9\nv_xor_b32 v5, 32, v4")
    else:
        a(f"""s_lshl_b32 s25, s3, 5
v_xor_b32 v9, s25, v9
s_mul_i32 s24, s3, {NF//2*2048}
s_add_u32 s24, s24, {ACT_B}
v_add_u32 v4, s24, v9
s_lshl_b32 s25, s3, 11
v_xor_b32 v5, 32, v4
v_add_u32 v5, s25, v5""")
    a("v_mov_b32 v6, v3\nv_mov_b32 v7, v4\nv_mov_b32 v8, v5")
    def reads(Fb,ph):
        r=[]
        for kp in range(KP):
            ks=ph*KP+kp
            ra=[f"ds_read_b128 {vr(fa(Fb,kp,tb),4)}, v6 offset:{(tb*KSS+ks)*1024}" for tb in range(TB)]
            rw=[]
            for f in range(NF):
                for b in range(2):
                    rw.append(f"ds_read_b64_tr_b16 {vr(fw(Fb,kp,f)+2*b,2)}, v{7+(f&1)} offset:{(ks*CB+(f>>1))*2048+b*1024}")
            r+=rw[:2]+ra+rw[2:]
        return r
    def mfmas(Fb):
        r=[]
        for kp in range(KP):
            for f in range(NF):
                for tb in range(TB):
                    if kind=='qkv' and f>=4: r.append(mf16(acc(tb,f),fa(Fb,kp,tb),fw(Fb,kp,f)))
                    else: r.append(mf16(acc(tb,f),fw(Fb,kp,f),fa(Fb,kp,tb)))
        return r
    a(f"s_lshl_b32 s27, s9, 3\ns_mul_i32 s24, s11, {TB}\ns_add_u32 s27, s27, s24\ns_waitcnt lgkmcnt(0)")
    T=F1
    if kind=='qkv':
        for i in range(NACC): a(f"v_mov_b32 v{ACC+i}, 0")
    if kind=='wo':
        srd(a,28,40,0,S*D*2)
        a(f"s_lshl_b32 s24, s27, 15\ns_lshl_b32 s25, s10, 7\ns_add_u32 s24, s24, s25\nv_lshlrev_b32 v9, 11, v1\nv_lshl_add_u32 v9, v2, 3, v9\ns_add_u32 s25, s24, 32768")
        for tb in range(TB):
            for f in range(NF):
                a(f"buffer_load_dwordx2 {vr(T+(tb*NF+f)*2,2)}, v9, s[28:31], s{24+tb} offen offset:{f*32}")
        a("s_waitcnt vmcnt(0)")
        for i in range(TB*NF*2):
            a(f"v_lshlrev_b32 v{ACC+2*i}, 16, v{T+i}\nv_and_b32 v{ACC+2*i+1}, 0xffff0000, v{T+i}")
    if kind=='ffn2':
        srd(a,28,4,WS_H,4*MB); srd(a,32,40,0,D*2); srd(a,36,42,0,S*D*2)
        a(f"s_lshl_b32 s24, s27, 15\ns_lshl_b32 s25, s10, 11\ns_add_u32 s24, s24, s25\ns_add_u32 s25, s24, 32768\nv_lshlrev_b32 v9, 4, v0\ns_lshl_b32 s26, s10, 7\nv_lshlrev_b32 v10, 3, v2")
        for tb in range(TB):
            for fp in range(NF//2):
                a(f"buffer_load_dwordx4 {vr(T+(tb*NF+2*fp)*2,4)}, v9, s[28:31], s{24+tb} offen offset:{fp*1024}")
        B=T+TB*NF*2
        for f in range(NF): a(f"buffer_load_dwordx2 {vr(B+2*f,2)}, v10, s[32:35], s26 offen offset:{f*32}")
        a("s_waitcnt vmcnt(0)")
        B2=B+2*NF
        for i in range(NF*2): a(f"v_lshlrev_b32 v{B2+2*i}, 16, v{B+i}\nv_and_b32 v{B2+2*i+1}, 0xffff0000, v{B+i}")
        for i in range(TB*NF*2):
            a(f"v_lshlrev_b32 v{ACC+2*i}, 16, v{T+i}\nv_and_b32 v{ACC+2*i+1}, 0xffff0000, v{T+i}")
        for i in range(NACC): a(f"v_add_f32 v{ACC+i}, v{ACC+i}, v{B2+i%(NF*4)}")
    if kind=='ffn1':
        RS=VTOP; VTOP+=4
        srd(a,28,4,WS_ST,S*128); srd(a,32,40,0,F*2); srd(a,36,4,WS_CS,8*F*4)
        a(f"s_lshl_b32 s24, s27, 11\nv_lshlrev_b32 v9, 7, v1\nv_lshl_add_u32 v9, v2, 5, v9\ns_add_u32 s25, s24, 4096")
        T0=F0
        for tb in range(TB):
            for hh in range(2):
                a(f"buffer_load_dwordx4 {vr(T0+tb*8+hh*4,4)}, v9, s[28:31], s{24+(tb>>1)} offen offset:{(tb&1)*2048+hh*16}")
        a(f"s_mul_i32 s24, s10, 224\ns_mul_i32 s25, s3, 112\ns_add_u32 s24, s24, s25\ns_lshl_b32 s25, s24, 2\ns_lshl_b32 s24, s24, 1\nv_lshlrev_b32 v10, 3, v2\nv_lshlrev_b32 v11, 4, v2")
        BB=T0+32; CS=BB+16
        for f in range(NF): a(f"buffer_load_dwordx2 {vr(BB+2*f,2)}, v10, s[32:35], s24 offen offset:{f*32}")
        for f in range(NF): a(f"buffer_load_dwordx4 {vr(CS+4*f,4)}, v11, s[36:39], s25 offen offset:{f*64}")
        a(f"s_waitcnt vmcnt({2*NF})")
        for tb in range(TB):
            t=T0+tb*8
            a(f"v_pk_add_f32 {vr(t,2)}, {vr(t,2)}, {vr(t+2,2)}\nv_pk_add_f32 {vr(t+4,2)}, {vr(t+4,2)}, {vr(t+6,2)}")
        for tb in range(TB):
            t=T0+tb*8
            a(f"v_pk_add_f32 {vr(t,2)}, {vr(t,2)}, {vr(t+4,2)}")
        for sw in ('16','32'):
            for tb in range(TB):
                t=T0+tb*8; a(f"v_mov_b32 v{t+2}, v{t}\nv_mov_b32 v{t+3}, v{t+1}")
            a("s_nop 1")
            for tb in range(TB):
                t=T0+tb*8; a(f"v_permlane{sw}_swap_b32 v{t}, v{t+2}\nv_permlane{sw}_swap_b32 v{t+1}, v{t+3}")
            a("s_nop 1")
            for tb in range(TB):
                t=T0+tb*8; a(f"v_pk_add_f32 {vr(t,2)}, {vr(t,2)}, {vr(t+2,2)}")
        a(f"s_mov_b32 s24, {f2u(1.0/D)}")
        for tb in range(TB):
            t=T0+tb*8
            a(f"""v_mul_f32 v{t}, s24, v{t}
v_mul_f32 v{t+1}, s24, v{t+1}
v_fma_f32 v{t+1}, -v{t}, v{t}, v{t+1}
v_max_f32 v{t+1}, 0, v{t+1}
v_add_f32 v{t+1}, {f2u(1e-5)}, v{t+1}
v_rsq_f32 v{RS+tb}, v{t+1}
v_sqrt_f32 v{t+1}, v{t+1}""")
        a("s_waitcnt vmcnt(0)")
        for f in range(NF):
            for hh in range(2):
                a(f"v_lshlrev_b32 v12, 16, v{BB+2*f+hh}\nv_and_b32 v13, 0xffff0000, v{BB+2*f+hh}")
                for tb in range(TB):
                    t=T0+tb*8
                    for e in range(2): a(f"v_mul_f32 v{acc(tb,f)+2*hh+e}, v{12+e}, v{t+1}")
                for tb in range(TB):
                    t=T0+tb*8
                    for e in range(2): a(f"v_fma_f32 v{acc(tb,f)+2*hh+e}, -v{t}, v{CS+4*f+2*hh+e}, v{acc(tb,f)+2*hh+e}")
    a(f"s_mov_b32 s22, 0\ns_mov_b32 s23, {nst}\ns_barrier")
    a.ext(reads(F0,0))
    a(f".p2align 5\n{name}_loop:")
    a(f"s_add_u32 s22, s22, {STG}\ns_cmp_eq_u32 s22, {lds}\ns_cselect_b32 s22, 0, s22\ns_sub_u32 s23, s23, 1\ns_waitcnt lgkmcnt(0)")
    a.ext(interleave(mfmas(F0),reads(F1,1),per=(2 if KP==2 else 1)))
    a("v_add_u32 v6, s22, v3\nv_add_u32 v7, s22, v4\nv_add_u32 v8, s22, v5\ns_cmp_lg_u32 s23, 0\ns_waitcnt lgkmcnt(0)\ns_barrier")
    a.ext(interleave(mfmas(F1),reads(F0,0),per=(2 if KP==2 else 1)))
    a(f"s_cbranch_scc1 {name}_loop")
    a("s_waitcnt lgkmcnt(0)\ns_nop 7")
    P=F0
    def pack(dst,s0,s1):
        return [f"v_cvt_pk_bf16_f32 v{dst}, v{s0}, v{s0+1}",f"v_cvt_pk_bf16_f32 v{dst+1}, v{s0+2}, v{s0+3}",
                f"v_cvt_pk_bf16_f32 v{dst+2}, v{s1}, v{s1+1}",f"v_cvt_pk_bf16_f32 v{dst+3}, v{s1+2}, v{s1+3}"]
    if kind=='qkv':
        srd(a,28,4,WS_Q,4*MB); srd(a,32,4,WS_KV,8*MB)
        a(f"""s_lshl_b32 s24, s10, 1
s_add_u32 s24, s24, s3
s_lshl_b32 s24, s24, 6
s_lshr_b32 s25, s27, 1
s_add_u32 s24, s24, s25
s_lshl_b32 s25, s24, 12
s_lshl_b32 s24, s24, 11
s_add_u32 s26, s25, 4096
v_lshlrev_b32 v9, 9, v2
v_lshl_add_u32 v10, v1, 4, v9
v_lshrrev_b32 v11, 3, v1
v_lshlrev_b32 v11, 8, v11
v_and_b32 v12, 7, v1
v_lshl_add_u32 v11, v12, 4, v11
v_add_u32 v11, v11, v9
s_mov_b32 s44, {f2u(DH**-0.5*1.4426950408889634)}
s_mov_b32 s45, s44""")
        for tb in range(TB):
            a.ext(pack(P+tb*4,acc(tb,2),acc(tb,3)))
            a(f"buffer_store_dwordx4 {vr(P+tb*4,4)}, v11, s[32:35], s{25+(tb>>1)} offen offset:{(tb&1)*128}")
        for kb in range(2):
            for e in range(2):
                d=P+16+(kb*2+e)*4
                a.ext(pack(d,acc(2*kb,4+e),acc(2*kb+1,4+e)))
                a(f"buffer_store_dwordx4 {vr(d,4)}, v10, s[32:35], s{25+kb} offen offset:{2048+e*256}")
        for tb in range(TB):
            for i in range(4): a(f"v_pk_mul_f32 {vr(acc(tb,0)+2*i,2)}, {vr(acc(tb,0)+2*i,2)}, s[44:45]")
            d=P+32+tb*4
            a.ext(pack(d,acc(tb,0),acc(tb,1)))
            a(f"buffer_store_dwordx4 {vr(d,4)}, v10, s[28:31], s24 offen offset:{(tb>>1)*2048+(tb&1)*256}")
    if kind=='wo':
        srd(a,28,4,WS_H,4*MB); srd(a,32,4,WS_ST,S*128)
        a(f"s_lshl_b32 s24, s27, 15\ns_lshl_b32 s25, s10, 11\ns_add_u32 s24, s24, s25\ns_add_u32 s25, s24, 32768\nv_lshlrev_b32 v9, 4, v0")
        for tb in range(TB):
            for fp in range(2):
                d=P+(tb*2+fp)*4
                a.ext(pack(d,acc(tb,2*fp),acc(tb,2*fp+1)))
                a(f"buffer_store_dwordx4 {vr(d,4)}, v9, s[28:31], s{24+tb} offen offset:{fp*1024}")
        Q=P+16
        for tb in range(TB):
            a(f"v_mov_b32 v{Q+4*tb}, 0\nv_mov_b32 v{Q+4*tb+1}, 0")
            for i in range(8):
                a(f"""v_lshlrev_b32 v12, 16, v{P+tb*8+i}
v_and_b32 v13, 0xffff0000, v{P+tb*8+i}
v_add_f32 v{Q+4*tb}, v{Q+4*tb}, v12
v_fmac_f32 v{Q+4*tb+1}, v12, v12
v_add_f32 v{Q+4*tb}, v{Q+4*tb}, v13
v_fmac_f32 v{Q+4*tb+1}, v13, v13""")
        for sw in ('16','32'):
            for tb in range(TB):
                t=Q+4*tb; a(f"v_mov_b32 v{t+2}, v{t}\nv_mov_b32 v{t+3}, v{t+1}")
            a("s_nop 1")
            for tb in range(TB):
                t=Q+4*tb; a(f"v_permlane{sw}_swap_b32 v{t}, v{t+2}\nv_permlane{sw}_swap_b32 v{t+1}, v{t+3}")
            a("s_nop 1")
            for tb in range(TB):
                t=Q+4*tb; a(f"v_pk_add_f32 {vr(t,2)}, {vr(t,2)}, {vr(t+2,2)}")
        a(f"s_lshl_b32 s24, s27, 11\ns_lshl_b32 s25, s10, 3\ns_add_u32 s24, s24, s25\nv_lshlrev_b32 v9, 7, v1\ns_mov_b64 exec, 0xffff")
        for tb in range(TB): a(f"buffer_store_dwordx2 {vr(Q+4*tb,2)}, v9, s[32:35], s24 offen offset:{tb*2048}")
    if kind=='ffn2':
        a(f"""s_lshl_b32 s24, s27, 15
s_lshl_b32 s25, s10, 7
s_add_u32 s24, s24, s25
s_add_u32 s25, s24, 32768
v_lshlrev_b32 v9, 11, v1
v_and_b32 v10, 1, v2
v_lshl_add_u32 v9, v10, 5, v9
v_lshrrev_b32 v10, 1, v2
v_lshl_add_u32 v9, v10, 4, v9""")
        for tb in range(TB):
            for fp in range(2):
                a.ext(pack(P+(tb*2+fp)*4,acc(tb,2*fp),acc(tb,2*fp+1)))
        a("s_nop 1")
        for tb in range(TB):
            for fp in range(2):
                d=P+(tb*2+fp)*4
                a(f"v_permlane16_swap_b32 v{d}, v{d+2}\nv_permlane16_swap_b32 v{d+1}, v{d+3}")
                a(f"buffer_store_dwordx4 {vr(d,4)}, v9, s[36:39], s{24+tb} offen offset:{fp*64}")
    if kind=='ffn1':
        srd(a,28,4,WS_G,14*MB)
        c0=-2*1.4426950408889634*0.7978845608028654; c1=c0*0.044715
        a(f"""s_mov_b32 s44, {f2u(c1)}
s_mov_b32 s45, s44
v_mov_b32 v12, {f2u(c0)}
v_mov_b32 v13, v12
s_mul_i32 s24, s27, {112*1024}
s_mul_i32 s25, s10, {7*1024}
s_add_u32 s24, s24, s25
s_mul_i32 s25, s3, {4*1024}
s_add_u32 s48, s24, s25
s_add_u32 s52, s24, {3*1024}
v_lshlrev_b32 v9, 4, v0
s_lshl_b32 s25, s3, 3
v_add_u32 v10, s25, v9""")
        for tb in range(1,TB): a(f"s_add_u32 s{48+tb}, s48, {tb*112*1024}\ns_add_u32 s{52+tb}, s52, {tb*112*1024}")
        def gelu(x,tb,t):
            r=[]
            for e in (0,2): r.append(f"v_pk_mul_f32 {vr(x+e,2)}, {vr(x+e,2)}, {vr(RS+(tb&~1),2)} op_sel:[0,{tb&1}] op_sel_hi:[1,{tb&1}]")
            for e in (0,2): r.append(f"v_pk_mul_f32 {vr(t+e,2)}, {vr(x+e,2)}, {vr(x+e,2)}")
            for e in (0,2): r.append(f"v_pk_fma_f32 {vr(t+e,2)}, {vr(t+e,2)}, s[44:45], v[12:13]")
            for e in (0,2): r.append(f"v_pk_mul_f32 {vr(t+e,2)}, {vr(t+e,2)}, {vr(x+e,2)}")
            for e in range(4): r.append(f"v_exp_f32 v{t+e}, v{t+e}")
            for e in (0,2): r.append(f"v_pk_add_f32 {vr(t+e,2)}, {vr(t+e,2)}, 1.0 op_sel_hi:[1,0]")
            for e in range(4): r.append(f"v_rcp_f32 v{t+e}, v{t+e}")
            for e in (0,2): r.append(f"v_pk_mul_f32 {vr(x+e,2)}, {vr(x+e,2)}, {vr(t+e,2)}")
            return r
        assert RS%2==0
        for wn in range(2):
            if wn==0: a(f"s_cmp_eq_u32 s3, 1\ns_cbranch_scc1 {name}_ep1")
            else: a(f"{name}_ep1:")
            cnt=0
            for tb in range(TB):
                f0=wn
                for fp in range(3):
                    g0=gelu(acc(tb,f0+2*fp),tb,P); g1=gelu(acc(tb,f0+2*fp+1),tb,P+4)
                    for x,y in zip(g0,g1): a(x); a(y)
                    d=P+8+(cnt%4)*4; cnt+=1
                    a.ext(pack(d,acc(tb,f0+2*fp),acc(tb,f0+2*fp+1)))
                    a(f"buffer_store_dwordx4 {vr(d,4)}, v9, s[28:31], s{48+tb} offen offset:{fp*1024}")
            fo=6 if wn==0 else 0
            for tb in (0,2):
                g0=gelu(acc(tb,fo),tb,P); g1=gelu(acc(tb+1,fo),tb+1,P+4)
                for x,y in zip(g0,g1): a(x); a(y)
                d=P+8+(cnt%4)*4; cnt+=1
                a.ext(pack(d,acc(tb,fo),acc(tb+1,fo)))
                a(f"buffer_store_dwordx2 {vr(d,2)}, v10, s[28:31], s{52+tb} offen\nbuffer_store_dwordx2 {vr(d+2,2)}, v10, s[28:31], s{53+tb} offen")
            if wn==0: a("s_endpgm")
    a(f"{name}_end:\ns_endpgm")
    assert VTOP<=256, VTOP
    return dict(name=name,text=khead(name)+a.txt(),desc=kdesc(name,VTOP),grid=256,block=512,lds=lds)
```

```python
from common import *
from gemm import f2u

def xreduce(a, regs, tmp, op="v_add_f32", sws=('16','32')):
    for sw in sws:
        for r,t in zip(regs,tmp): a(f"v_mov_b32 v{t}, v{r}")
        a("s_nop 1")
        for r,t in zip(regs,tmp): a(f"v_permlane{sw}_swap_b32 v{r}, v{t}")
        a("s_nop 1")
        for r,t in zip(regs,tmp): a(f"{op} v{r}, v{r}, v{t}")

def prefetch(a, ptr, size, nwg, wgreg, nthreads, vbase, tid='v0'):
    per=size//nwg; n=per//(nthreads*16); assert n*nthreads*16*nwg==size
    srd(a,12,ptr,0,size)
    a(f"s_mul_i32 s20, s{wgreg}, {per}\nv_lshlrev_b32 v1, 4, {tid}")
    for i in range(n):
        a(f"buffer_load_dwordx4 {vr(vbase+4*(i%8),4)}, v1, s[12:15], s20 offen\ns_add_u32 s20, s20, {nthreads*16}")

def ln1(name):
    a=A()
    a(f"""s_cmp_ge_u32 s2, 256
s_cbranch_scc1 {name}_end
s_load_dwordx4 s[4:7], s[0:1], {KA_X}
s_load_dwordx2 s[8:9], s[0:1], {KA_WS}
s_lshr_b32 s3, s2, 1
s_and_b32 s24, s2, 1
s_cmp_eq_u32 s24, 0
s_cbranch_scc1 {name}_ln
s_waitcnt lgkmcnt(0)""")
    prefetch(a,6,D*3*D*2,128,3,256,8)
    a(f"s_waitcnt vmcnt(0)\ns_endpgm\n{name}_ln:")
    X=16; U=48
    a(f"""v_lshrrev_b32 v1, 6, v0
v_and_b32 v0, 63, v0
v_and_b32 v2, 15, v0
v_readfirstlane_b32 s10, v1
v_lshrrev_b32 v3, 4, v0
v_lshlrev_b32 v4, 11, v2
v_lshl_add_u32 v4, v3, 4, v4
s_lshl_b32 s20, s3, 15
s_lshl_b32 s21, s10, 9
s_add_u32 s21, s21, s20
s_lshl_b32 s22, s10, 13
s_add_u32 s22, s22, s20
s_add_u32 s23, s22, 4096
s_waitcnt lgkmcnt(0)""")
    srd(a,12,4,0,S*D*2);
    for i in range(8): a(f"buffer_load_dwordx4 {vr(X+4*i,4)}, v4, s[12:15], s21 offen offset:{i*64}")
    srd(a,16,8,WS_XN,4*MB)
    a(f"""v_lshlrev_b32 v5, 4, v2
s_lshl_b32 s24, s10, 2
v_add_u32 v6, s24, v5
v_lshlrev_b32 v7, 4, v0
v_mov_b32 v8, 0
v_mov_b32 v9, 0""")
    for i in range(8):
        a(f"s_waitcnt vmcnt({7-i})")
        for j in range(4):
            r=4*i+j
            a(f"v_lshlrev_b32 v{U+2*r}, 16, v{X+r}\nv_and_b32 v{U+2*r+1}, 0xffff0000, v{X+r}\nv_pk_add_f32 v[8:9], v[8:9], {vr(U+2*r,2)}")
    def wgreduce(off):
        a("v_add_f32 v8, v8, v9")
        xreduce(a,[8],[9])
        a(f"""ds_write_b32 v6, v8 offset:{off}
s_waitcnt lgkmcnt(0)
s_barrier
ds_read_b128 v[12:15], v5 offset:{off}
s_waitcnt lgkmcnt(0)
v_add_f32 v12, v12, v13
v_add_f32 v14, v14, v15
v_add_f32 v12, v12, v14""")
    wgreduce(0)
    a(f"v_mul_f32 v10, {f2u(-1.0/D)}, v12\nv_mov_b32 v8, 0\nv_mov_b32 v9, 0")
    for r in range(32):
        a(f"v_pk_add_f32 {vr(U+2*r,2)}, {vr(U+2*r,2)}, v[10:11] op_sel_hi:[1,0]")
    for r in range(32):
        a(f"v_pk_fma_f32 v[8:9], {vr(U+2*r,2)}, {vr(U+2*r,2)}, v[8:9]")
    wgreduce(256)
    a(f"v_mov_b32 v13, {f2u(1e-5)}\nv_fmac_f32 v13, {f2u(1.0/D)}, v12\nv_rsq_f32 v10, v13\ns_nop 0")
    for i in range(8):
        for j in range(4):
            r=4*i+j
            a(f"v_pk_mul_f32 {vr(U+2*r,2)}, {vr(U+2*r,2)}, v[10:11] op_sel_hi:[1,0]")
        for j in range(4):
            r=4*i+j
            a(f"v_cvt_pk_bf16_f32 v{X+r}, v{U+2*r}, v{U+2*r+1}")
        a(f"buffer_store_dwordx4 {vr(X+4*i,4)}, v7, s[16:19], s{22+(i>>2)} offen offset:{(i&3)*1024}")
    a(f"{name}_end:\ns_endpgm")
    return dict(name=name,text=khead(name)+a.txt(),desc=kdesc(name,112,40),grid=256,block=256,lds=512)

NCS=56; NPF=36
def attn(name):
    a=A()
    G=256+NCS+NPF
    a(f"""s_cmp_ge_u32 s2, {G}
s_cbranch_scc1 {name}_end
s_load_dwordx2 s[4:5], s[0:1], {KA_WS}
s_cmp_lt_u32 s2, 256
s_cbranch_scc1 {name}_att
s_load_dwordx2 s[6:7], s[0:1], {KA_W1}
s_load_dwordx2 s[8:9], s[0:1], {KA_WO}
s_load_dwordx2 s[10:11], s[0:1], {KA_W2}
s_sub_u32 s3, s2, 256
s_waitcnt lgkmcnt(0)
s_cmp_lt_u32 s3, {NCS}
s_cbranch_scc1 {name}_cs
s_sub_u32 s3, s3, {NCS}
s_cmp_lt_u32 s3, 8
s_cbranch_scc0 {name}_pf2""")
    prefetch(a,8,D*D*2,8,3,512,8)
    a(f"s_waitcnt vmcnt(0)\ns_endpgm\n{name}_pf2:\ns_sub_u32 s3, s3, 8")
    prefetch(a,10,F*D*2,28,3,512,8)
    a(f"s_waitcnt vmcnt(0)\ns_endpgm\n{name}_cs:")
    srd(a,12,6,0,D*F*2); srd(a,16,4,WS_CS,F*4)
    a(f"""v_lshrrev_b32 v1, 3, v0
v_and_b32 v2, 7, v0
s_movk_i32 s24, {F*2}
v_mul_lo_u32 v3, v1, s24
v_lshl_add_u32 v3, v2, 4, v3
s_lshl_b32 s20, s3, 7""")
    for i in range(16): a(f"buffer_load_dwordx4 {vr(16+4*i,4)}, v3, s[12:15], s20 offen\ns_add_u32 s20, s20, {64*F*2}")
    for j in range(8): a(f"v_mov_b32 v{8+j}, 0")
    for i in range(16):
        a(f"s_waitcnt vmcnt({15-i})")
        for j in range(4):
            a(f"v_lshlrev_b32 v4, 16, v{16+4*i+j}\nv_and_b32 v5, 0xffff0000, v{16+4*i+j}\nv_pk_add_f32 {vr(8+2*j,2)}, {vr(8+2*j,2)}, v[4:5]")
    a(f"""v_lshlrev_b32 v4, 5, v0
ds_write_b128 v4, v[8:11]
ds_write_b128 v4, v[12:15] offset:16
s_waitcnt lgkmcnt(0)
s_barrier
v_cmp_gt_u32 vcc, 64, v0
s_and_saveexec_b64 s[24:25], vcc
s_cbranch_execz {name}_end
v_lshlrev_b32 v4, 2, v0""")
    for i in range(64): a(f"ds_read_b32 v{16+i}, v4 offset:{i*256}")
    a("s_waitcnt lgkmcnt(0)")
    for i in range(1,64): a(f"v_add_f32 v16, v16, v{16+i}")
    a(f"s_lshl_b32 s20, s3, 8\nbuffer_store_dword v16, v4, s[16:19], s20 offen\ns_endpgm")
    SA=16; SB=32; O=48; NM=64; Q=80; Kf=88; Vf=96; P=104; L=112; ON=116; VT=120
    a(f"""{name}_att:
v_lshrrev_b32 v1, 6, v0
v_and_b32 v0, 63, v0
s_and_b32 s24, s2, 7
v_readfirstlane_b32 s8, v1
s_lshr_b32 s25, s2, 3
s_lshl_b32 s9, s24, 2
s_lshr_b32 s26, s25, 3
s_add_u32 s9, s9, s26
s_and_b32 s25, s25, 7
s_lshl_b32 s10, s25, 3
s_add_u32 s10, s10, s8
v_lshlrev_b32 v2, 4, v0
s_lshl_b32 s24, s9, 18
s_lshl_b32 s44, s8, 11
v_add_u32 v3, s44, v2
s_mov_b32 s40, 0
s_waitcnt lgkmcnt(0)
s_add_u32 s12, s4, s24
s_addc_u32 s13, s5, 0
s_add_u32 s12, s12, {hex(WS_KV)}
s_addc_u32 s13, s13, 0
s_mov_b32 s14, 0x40000
s_mov_b32 s15, 0x20000""")
    srd(a,16,4,WS_Q,4*MB)
    a(f"""s_lshl_b32 s24, s9, 6
s_add_u32 s24, s24, s10
s_lshl_b32 s24, s24, 11
buffer_load_dwordx4 {vr(Q,4)}, v2, s[16:19], s24 offen
buffer_load_dwordx4 {vr(Q+4,4)}, v2, s[16:19], s24 offen offset:1024""")
    srd(a,16,4,WS_O,4*MB)
    a(f"""v_lshrrev_b32 v4, 4, v0
v_lshrrev_b32 v5, 2, v0
v_xor_b32 v4, v4, v5
v_and_b32 v4, 1, v4
v_cmp_eq_u32 vcc, 0, v4
v_mov_b32 v5, 0x3f803f80
s_nop 1
v_cndmask_b32 v{ON}, 0, v5, vcc
v_cndmask_b32 v{ON+1}, 0, v5, vcc
v_cndmask_b32 v{ON+2}, 0, v5, vcc
v_cndmask_b32 v{ON+3}, 0, v5, vcc""")
    def dma():
        return ["s_add_u32 m0, s22, s44","s_add_u32 s22, s22, 0x4000",
                "buffer_load_dwordx4 v3, s[12:15], s20 offen lds","buffer_load_dwordx4 v3, s[12:15], s20 offen offset:1024 lds",
                "s_add_u32 s20, s20, 0x4000","s_and_b32 s22, s22, 0xffff"]
    a(f"{name}_restart:\ns_mov_b32 s20, 0\ns_mov_b32 s22, 0")
    for i in range(3): a.ext(dma())
    for i in range(16): a(f"v_mov_b32 v{O+i}, 0")
    for i in range(4): a(f"v_mov_b32 v{L+i}, 0\nv_mov_b32 v{P+4+i}, 0\nv_mov_b32 v{Vf+4+i}, 0")
    a(f"""v_mov_b32 v6, v2
v_add_u32 v7, 0x4000, v2
s_mov_b32 s23, 16
s_mov_b32 s21, 0x4000
s_waitcnt vmcnt(4)
s_barrier
ds_read_b128 {vr(Kf,4)}, v6
ds_read_b128 {vr(Kf+4,4)}, v6 offset:1024
s_cmp_lg_u32 s40, 0
s_cbranch_scc1 {name}_havemax
s_waitcnt lgkmcnt(0)
{mf32(SA,Kf,Q,'0')}
{mf32(SA,Kf+4,Q+4)}
s_nop 15
v_max3_f32 v8, v{SA}, v{SA+1}, v{SA+2}""")
    for i in range(3,15,2): a(f"v_max3_f32 v8, v{SA+i}, v{SA+i+1}, v8")
    a(f"v_max_f32 v8, v{SA+15}, v8")
    xreduce(a,[8],[9],"v_max_f32",('32',))
    a(f"{name}_havemax:")
    for i in range(16): a(f"v_sub_f32 v{NM+i}, 0, v8")
    a(f"""s_waitcnt lgkmcnt(0)
s_nop 0
{mf32(SA,Kf,Q,vr(NM,16))}
{mf32(SA,Kf+4,Q+4)}
ds_read_b128 {vr(Kf,4)}, v6 offset:4096
ds_read_b128 {vr(Kf+4,4)}, v6 offset:{4096+1024}
ds_read_b128 {vr(Vf,4)}, v6 offset:2048
s_waitcnt lgkmcnt(0)
s_nop 7
.p2align 5
{name}_loop:""")
    def rd(dst,t,off):
        return f"ds_read_b128 {vr(dst,4)}, v{6 if t<4 else 7} offset:{(t%4)*4096+off}"
    ex=lambda s,i: f"v_exp_f32 v{s+i}, v{s+i}"
    cv=lambda d,s: f"v_cvt_pk_bf16_f32 v{d}, v{s}, v{s+1}"
    for t in range(4):
        C,N=(SA,SB) if t%2==0 else (SB,SA)
        if t==2:
            a("s_waitcnt vmcnt(2)\ns_barrier"); a.ext(dma())
        a("s_waitcnt lgkmcnt(3)")
        a(mf32(N,Kf,Q,vr(NM,16))); a(rd(Kf,t+2,0))
        for i in range(0,4): a(ex(C,i))
        a("s_waitcnt lgkmcnt(3)")
        a(mf32(O,Vf+4,P+4)); a(rd(Vf+4,t,3072))
        for i in range(4,6): a(ex(C,i))
        a(mf16(L,ON,P+4))
        for i in range(6,8): a(ex(C,i))
        a(cv(P,C)); a(cv(P+1,C+2))
        a("s_waitcnt lgkmcnt(3)")
        a(mf32(N,Kf+4,Q+4)); a(rd(Kf+4,t+2,1024))
        a(cv(P+2,C+4)); a(cv(P+3,C+6))
        for i in range(8,11): a(ex(C,i))
        a("s_waitcnt lgkmcnt(3)")
        a(mf32(O,Vf,P)); a(rd(Vf,t+1,2048))
        for i in range(11,14): a(ex(C,i))
        a(mf16(L,ON,P))
        for i in range(14,16): a(ex(C,i))
        if t==3: a("s_add_u32 s21, s21, 0x4000\ns_and_b32 s21, s21, 0xffff\ns_sub_u32 s23, s23, 1\ns_cmp_lg_u32 s23, 0\nv_mov_b32 v6, v7")
        a(cv(P+4,C+8)); a(cv(P+5,C+10)); a(cv(P+6,C+12)); a(cv(P+7,C+14))
        if t==3: a("v_add_u32 v7, s21, v2")
    a(f"""s_cbranch_scc1 {name}_loop
s_waitcnt lgkmcnt(0)
{mf32(O,Vf+4,P+4)}
{mf16(L,ON,P+4)}
s_waitcnt vmcnt(0)
s_nop 15
s_cmp_lg_u32 s40, 0
s_cbranch_scc1 {name}_fin
v_mov_b32 v8, 0""")
    for i in range(16): a(f"v_fma_f32 v8, v{O+i}, 0, v8")
    a(f"""v_add_f32 v8, v8, v{L}
v_cmp_ngt_f32 vcc, {f2u(2.0**60)}, v8
s_barrier
s_cmp_lg_u64 vcc, 0
s_cselect_b32 s24, 1, 0
v_mov_b32 v9, s24
s_lshl_b32 s25, s8, 2
v_mov_b32 v10, s25
ds_write_b32 v10, v9
s_waitcnt lgkmcnt(0)
s_barrier
v_and_b32 v10, 7, v0
v_lshlrev_b32 v10, 2, v10
ds_read_b32 v9, v10
s_waitcnt lgkmcnt(0)
v_cmp_ne_u32 vcc, 0, v9
s_nop 1
s_cmp_eq_u64 vcc, 0
s_cbranch_scc1 {name}_fin
s_barrier
s_mov_b32 s40, 1
s_mov_b32 s20, 0
v_mov_b32 v8, 0xff800000
{name}_mx:
buffer_load_dwordx4 {vr(Kf,4)}, v2, s[12:15], s20 offen
buffer_load_dwordx4 {vr(Kf+4,4)}, v2, s[12:15], s20 offen offset:1024
s_add_u32 s20, s20, 0x1000
s_waitcnt vmcnt(0)
{mf32(SA,Kf,Q,'0')}
{mf32(SA,Kf+4,Q+4)}
s_nop 15""")
    for i in range(0,16,2): a(f"v_max3_f32 v8, v{SA+i}, v{SA+i+1}, v8")
    a(f"s_cmp_lt_u32 s20, 0x40000\ns_cbranch_scc1 {name}_mx")
    xreduce(a,[8],[9],"v_max_f32",('32',))
    a(f"""s_branch {name}_restart
{name}_fin:
v_rcp_f32 v8, v{L}
s_lshl_b32 s24, s10, 16
s_lshl_b32 s25, s9, 10
s_add_u32 s24, s24, s25
v_bfe_u32 v9, v0, 4, 1
v_lshlrev_b32 v9, 15, v9
v_and_b32 v10, 15, v0
v_lshl_add_u32 v9, v10, 4, v9
v_lshrrev_b32 v10, 5, v0
v_lshl_add_u32 v9, v10, 8, v9""")
    for i in range(8): a(f"v_pk_mul_f32 {vr(O+2*i,2)}, {vr(O+2*i,2)}, v[8:9] op_sel_hi:[1,0]")
    for i in range(8): a(cv(P+i,O+2*i))
    a(f"""buffer_store_dwordx4 {vr(P,4)}, v9, s[16:19], s24 offen
buffer_store_dwordx4 {vr(P+4,4)}, v9, s[16:19], s24 offen offset:512
{name}_end:
s_endpgm""")
    return dict(name=name,text=khead(name)+a.txt(),desc=kdesc(name,VT,64),grid=G,block=512,lds=65536)
```

```python
import sys; sys.path.insert(0,'gen')
from common import *
from gemm import gemm
from other import ln1, attn
ks=[ln1('ln1_kernel'),gemm('qkv_kernel','qkv'),attn('attn_kernel'),gemm('wo_kernel','wo'),gemm('ffn1_kernel','ffn1'),gemm('ffn2_kernel','ffn2')]
out="; pre-LN transformer block: LN1 | QKV | attention | Wo+res | LN2-folded FFN1+GELU | FFN2+res\n"
for k in ks: out+=f"; @launch kernel={k['name']} grid=({k['grid']},1,1) block=({k['block']},1,1) lds={k['lds']}\n"
out+='.amdgcn_target "amdgcn-amd-amdhsa--gfx950"\n.text\n'+''.join(k['text'] for k in ks)+'.section .rodata,"a"\n'+''.join(k['desc'] for k in ks)
p=sys.argv[1] if len(sys.argv)>1 else 'sequential_preLN__softmax_full_mha__dense_activation_gelu__prompt.s'
open(p,'w').write(out)
```

```python
S=2048; D=1024; F=3584; H=32; DH=32
MB=1<<20
WS_XN=0*MB; WS_Q=4*MB; WS_KV=8*MB; WS_O=16*MB; WS_H=20*MB; WS_G=24*MB
WS_ST=40*MB
WS_CS=41*MB
KA_X,KA_WQKV,KA_WO,KA_BX,KA_W1,KA_B1,KA_W2,KA_B2,KA_OUT,KA_DBG,KA_WS=[8*i for i in range(11)]

class A:
    def __init__(s): s.l=[]
    def __call__(s,t):
        for x in t.strip('\n').split('\n'):
            x=x.strip()
            if not x: continue
            s.l.append(x if x.endswith(':') else '  '+x)
    def ext(s,ls):
        for x in ls: s(x)
    def txt(s): return '\n'.join(s.l)+'\n'

def vr(b,n=1): return f"v{b}" if n==1 else f"v[{b}:{b+n-1}]"
def sr(b,n=1): return f"s{b}" if n==1 else f"s[{b}:{b+n-1}]"
def mf16(d,a,b,c=None):
    c=vr(d,4) if c is None else c
    return f"v_mfma_f32_16x16x32_bf16 {vr(d,4)}, {vr(a,4)}, {vr(b,4)}, {c}"
def mf32(d,a,b,c=None):
    c=vr(d,16) if c is None else c
    return f"v_mfma_f32_32x32x16_bf16 {vr(d,16)}, {vr(a,4)}, {vr(b,4)}, {c}"
def srd(a,dst,base,off,size):
    if off:
        a(f"s_add_u32 s{dst}, s{base}, {hex(off)}\ns_addc_u32 s{dst+1}, s{base+1}, 0")
    else:
        a(f"s_mov_b32 s{dst}, s{base}\ns_mov_b32 s{dst+1}, s{base+1}")
    a(f"s_mov_b32 s{dst+2}, {hex(size)}\ns_mov_b32 s{dst+3}, 0x20000")
def interleave(mains, fills, start=0, per=1):
    out=[]; j=0
    for i,m in enumerate(mains):
        out.append(m)
        if i>=start:
            out+=fills[j:j+per]; j+=per
    return out+fills[j:]
def khead(name):
    return f".globl {name}\n.p2align 8\n.type {name},@function\n{name}:\n"
def kdesc(name,vg,sg=96):
    acc=(vg+3)//4*4
    return f""".p2align 6
.amdhsa_kernel {name}
  .amdhsa_next_free_vgpr {vg}
  .amdhsa_next_free_sgpr {sg}
  .amdhsa_accum_offset {acc}
  .amdhsa_group_segment_fixed_size 0
  .amdhsa_kernarg_size 88
  .amdhsa_user_sgpr_count 2
  .amdhsa_user_sgpr_kernarg_segment_ptr 1
  .amdhsa_system_sgpr_workgroup_id_x 1
.end_amdhsa_kernel
"""
import os
STAMP=int(os.environ.get('STAMP','0'))
WS_TS=44*MB
def stamp(a,i):
    if STAMP: a(f"s_memtime s[{64+2*i}:{65+2*i}]" if i>=0 else "s_memrealtime s[80:81]")
def stamp_out(a,kid,n,wsreg=4,wave='s8'):
    if not STAMP: return
    a("s_waitcnt vmcnt(0)"); stamp(a,n); a("s_memrealtime s[82:83]\ns_waitcnt lgkmcnt(0)")
    a(f"s_mov_b64 exec, 1\ns_lshl_b32 s84, s2, 3\ns_add_u32 s84, s84, {wave}\ns_lshl_b32 s84, s84, 6\ns_add_u32 s84, s84, {WS_TS+kid*(1<<18)}\nv_mov_b32 v0, s84")
    for i in range(n+1): a(f"v_mov_b32 v1, s{64+2*i}\nglobal_store_dword v0, v1, s[{wsreg}:{wsreg+1}] offset:{4*i}")
    a(f"v_mov_b32 v1, s80\nglobal_store_dword v0, v1, s[{wsreg}:{wsreg+1}] offset:56\nv_mov_b32 v1, s82\nglobal_store_dword v0, v1, s[{wsreg}:{wsreg+1}] offset:60")
```

```python
from common import *
import struct
def f2u(x): return hex(struct.unpack('<I',struct.pack('<f',x))[0])

def gemm(name, kind):
    cfg=dict(
      qkv =dict(BN=192,WM=2,TB=4,NF=6,KP=1,NS=4,K=1024,ldw=6144,wka=KA_WQKV,act=WS_XN,perm='nat',xr=8),
      wo  =dict(BN=64, WM=4,TB=2,NF=4,KP=2,NS=3,K=1024,ldw=2048,wka=KA_WO,  act=WS_O, perm='att',xr=4),
      ffn1=dict(BN=224,WM=2,TB=4,NF=7,KP=1,NS=3,K=1024,ldw=7168,wka=KA_W1,  act=WS_H, perm='id', xr=8),
      ffn2=dict(BN=64, WM=4,TB=2,NF=4,KP=2,NS=3,K=3584,ldw=2048,wka=KA_W2,  act=WS_G, perm='id', xr=4),
    )[kind]
    BN,WM,TB,NF,KP,NS,K,ldw=[cfg[k] for k in 'BN WM TB NF KP NS K ldw'.split()]
    KSS=2*KP
    KS=K//32; nst=KS//KSS
    CB=BN//32
    ACT_B=8*KSS*1024
    W_B=KSS*CB*2048
    STG=ACT_B+W_B
    lds=STG*NS
    a=A(); KID={'qkv':1,'wo':3,'ffn1':4,'ffn2':5}[kind]
    a(f"""s_cmp_ge_u32 s2, 256
s_cbranch_scc1 {name}_end
s_load_dwordx2 s[4:5], s[0:1], {KA_WS}
s_load_dwordx2 s[6:7], s[0:1], {cfg['wka']}""")
    stamp(a,-1); stamp(a,0)
    if kind=='wo': a(f"s_load_dwordx2 s[40:41], s[0:1], {KA_X}")
    if kind=='ffn1': a(f"s_load_dwordx2 s[40:41], s[0:1], {KA_B1}")
    if kind=='ffn2': a(f"s_load_dwordx4 s[40:43], s[0:1], {KA_B2}")
    xr=cfg['xr']; lx={8:3,4:2}[xr]; nxr=16//xr; lnx={2:1,4:2}[nxr]; xc=32//xr
    a(f"""v_lshrrev_b32 v1, 6, v0
v_and_b32 v0, 63, v0
s_and_b32 s24, s2, 7
v_readfirstlane_b32 s8, v1
s_lshr_b32 s25, s2, 3
s_and_b32 s26, s24, {nxr-1}
s_lshl_b32 s26, s26, {lx}
s_and_b32 s9, s25, {xr-1}
s_add_u32 s9, s9, s26
s_lshr_b32 s26, s24, {lnx}
s_mul_i32 s26, s26, {xc}
s_lshr_b32 s10, s25, {lx}
s_add_u32 s10, s10, s26
s_cmp_lt_u32 s8, 4
s_cbranch_scc1 {name}_comp""")
    nA=8*KSS//4; nW=KSS*CB*2//4;
    assert (KSS*CB*2)%4==0 or True
    totW=KSS*CB*2; assert totW%4==0, totW
    n=nA+nW
    a("s_sub_u32 s8, s8, 4")
    a(f"""s_lshl_b32 s24, s9, 3
s_lshl_b32 s25, s8, 1
s_add_u32 s24, s24, s25
s_mul_i32 s24, s24, {KS*1024}
v_lshl_add_u32 v2, v0, 4, s24
v_add_u32 v3, {KS*1024}, v2""")
    a("""v_lshrrev_b32 v4, 4, v0
v_bfe_u32 v5, v0, 2, 2
v_and_b32 v6, 1, v4
v_and_b32 v7, 3, v0
v_lshlrev_b32 v8, 1, v6
v_xor_b32 v7, v7, v8""")
    p=cfg['perm']
    if p=='id':   bmul=16; a("v_lshl_add_u32 v9, v4, 2, v5")
    if p=='nat':  bmul=4;  a("v_lshl_add_u32 v9, v4, 3, v5")
    if p=='att':  bmul=8;  a("v_lshrrev_b32 v8, 1, v4\nv_lshlrev_b32 v8, 4, v8\nv_lshl_add_u32 v9, v6, 2, v5\nv_add_u32 v9, v9, v8")
    a(f"""s_movk_i32 s24, {ldw}
v_mul_lo_u32 v9, v9, s24
v_lshl_add_u32 v9, v7, 4, v9""")
    colb = 128 if kind=='qkv' else BN*2
    a(f"s_mul_i32 s21, s10, {colb}\ns_mov_b32 s20, 0")
    for j in range(nW):
        a(f"s_mul_i32 s24, s8, {nW}\ns_add_u32 s24, s24, {j}\ns_and_b32 s25, s24, 1\ns_lshr_b32 s24, s24, 1")
        a(f"s_mul_i32 s26, s24, {(65536+CB-1)//CB}\ns_lshr_b32 s26, s26, 16\ns_mul_i32 s27, s26, {CB}\ns_sub_u32 s24, s24, s27")
        a(f"s_mul_i32 s25, s25, {bmul*ldw}\ns_mul_i32 s26, s26, {32*ldw}\ns_add_u32 s25, s25, s26")
        if kind=='qkv':
            a("s_cmp_ge_u32 s24, 3\ns_cselect_b32 s26, 3, 0\ns_cselect_b32 s27, 64, 0\ns_sub_u32 s24, s24, s26\ns_lshl_b32 s24, s24, 11\ns_add_u32 s24, s24, s27")
        else: a("s_lshl_b32 s24, s24, 6")
        a(f"s_add_u32 s24, s24, s25\nv_add_u32 v{10+j}, s24, v9")
    a(f"s_mul_i32 s44, s8, {2*KSS*1024}\ns_mul_i32 s45, s8, {nW*1024}\ns_add_u32 s45, s45, {ACT_B}\ns_waitcnt lgkmcnt(0)")
    srd(a,12,4,cfg['act'],128*KS*1024)
    srd(a,16,6,0,K*ldw)
    def issue():
        r=[]
        ad=[]; wd=[]
        for i in range(2):
            for ks in range(KSS):
                ad.append((f"s_add_u32 m0, s46, {i*KSS*1024}", f"buffer_load_dwordx4 v{2+i}, s[12:15], s20 offen offset:{ks*1024} lds"))
        for j in range(nW):
            wd.append((f"s_add_u32 m0, s47, {j*1024}", f"buffer_load_dwordx4 v{10+j}, s[16:19], s21 offen lds"))
        r.append("s_add_u32 s46, s22, s44\ns_add_u32 s47, s22, s45")
        for m,l in wd+ad: r.append(m+"\ns_nop 0\n"+l)
        r.append(f"s_add_u32 s20, s20, {KSS*1024}\ns_add_u32 s21, s21, {KSS*32*ldw}\ns_add_u32 s22, s22, {STG}\ns_cmp_eq_u32 s22, {lds}\ns_cselect_b32 s22, 0, s22")
        return r
    a(f"s_mov_b32 s22, 0\ns_mov_b32 s23, 0")
    a(f"{name}_ld:")
    a.ext(issue())
    a(f"""s_add_u32 s23, s23, 1
s_cmp_lt_u32 s23, {NS}
s_cbranch_scc1 {name}_ld
s_cmp_gt_u32 s23, {NS}
s_cbranch_scc1 {name}_ld1
s_waitcnt vmcnt({(NS-1)*n})
s_barrier
{name}_ld1:
s_waitcnt vmcnt({(NS-2)*n})
s_barrier
s_cmp_lt_u32 s23, {nst}
s_cbranch_scc1 {name}_ld""")
    for b in range(nst-NS+2, nst+1):
        rem=max(nst-1-b,0)
        a(f"s_waitcnt vmcnt({rem*n})\ns_barrier")
    a("s_endpgm")
    a(f"{name}_comp:")
    NACC=TB*NF*4; FR=KP*(TB+NF)*4
    ACC=16; F0=ACC+NACC; F1=F0+FR; VTOP=F1+FR
    acc=lambda tb,f: ACC+(tb*NF+f)*4
    fa=lambda Fb,kp,tb: Fb+kp*(TB+NF)*4+tb*4
    fw=lambda Fb,kp,f: Fb+kp*(TB+NF)*4+(TB+f)*4
    if WM==2: a("s_lshr_b32 s11, s8, 1\ns_and_b32 s3, s8, 1")
    else: a("s_mov_b32 s11, s8\ns_mov_b32 s3, 0")
    a(f"""v_and_b32 v1, 15, v0
v_lshrrev_b32 v2, 4, v0
s_mul_i32 s24, s11, {TB*KSS*1024}
v_lshl_add_u32 v3, v0, 4, s24
v_lshrrev_b32 v9, 2, v0
v_lshlrev_b32 v9, 6, v9
v_and_b32 v10, 3, v0
v_lshl_add_u32 v9, v10, 3, v9
v_and_b32 v10, 1, v2
v_lshlrev_b32 v10, 5, v10
v_add_u32 v9, v9, v10""")
    if NF%2==0:
        a(f"s_mul_i32 s24, s3, {NF//2*2048}\ns_add_u32 s24, s24, {ACT_B}\nv_add_u32 v4, s24, v9\nv_xor_b32 v5, 32, v4")
    else:
        a(f"""s_lshl_b32 s25, s3, 5
v_xor_b32 v9, s25, v9
s_mul_i32 s24, s3, {NF//2*2048}
s_add_u32 s24, s24, {ACT_B}
v_add_u32 v4, s24, v9
s_lshl_b32 s25, s3, 11
v_xor_b32 v5, 32, v4
v_add_u32 v5, s25, v5""")
    a("v_mov_b32 v6, v3\nv_mov_b32 v7, v4\nv_mov_b32 v8, v5")
    def reads(Fb,ph):
        r=[]
        for kp in range(KP):
            ks=ph*KP+kp
            ra=[f"ds_read_b128 {vr(fa(Fb,kp,tb),4)}, v6 offset:{(tb*KSS+ks)*1024}" for tb in range(TB)]
            rw=[]
            for f in range(NF):
                for b in range(2):
                    rw.append(f"ds_read_b64_tr_b16 {vr(fw(Fb,kp,f)+2*b,2)}, v{7+(f&1)} offset:{(ks*CB+(f>>1))*2048+b*1024}")
            r+=rw[:2]+ra+rw[2:]
        return r
    def mfmas(Fb):
        r=[]
        for kp in range(KP):
            for f in range(NF):
                for tb in range(TB):
                    if kind=='qkv' and f>=4: r.append(mf16(acc(tb,f),fa(Fb,kp,tb),fw(Fb,kp,f)))
                    else: r.append(mf16(acc(tb,f),fw(Fb,kp,f),fa(Fb,kp,tb)))
        return r
    a(f"s_lshl_b32 s27, s9, 3\ns_mul_i32 s24, s11, {TB}\ns_add_u32 s27, s27, s24\ns_waitcnt lgkmcnt(0)")
    T=F1
    if kind=='qkv':
        for i in range(NACC): a(f"v_mov_b32 v{ACC+i}, 0")
    if kind=='wo':
        srd(a,28,40,0,S*D*2)
        a(f"s_lshl_b32 s24, s27, 15\ns_lshl_b32 s25, s10, 7\ns_add_u32 s24, s24, s25\nv_lshlrev_b32 v9, 11, v1\nv_lshl_add_u32 v9, v2, 3, v9\ns_add_u32 s25, s24, 32768")
        for tb in range(TB):
            for f in range(NF):
                a(f"buffer_load_dwordx2 {vr(T+(tb*NF+f)*2,2)}, v9, s[28:31], s{24+tb} offen offset:{f*32}")
        a("s_waitcnt vmcnt(0)")
        for i in range(TB*NF*2):
            a(f"v_lshlrev_b32 v{ACC+2*i}, 16, v{T+i}\nv_and_b32 v{ACC+2*i+1}, 0xffff0000, v{T+i}")
    if kind=='ffn2':
        srd(a,28,4,WS_H,4*MB); srd(a,32,40,0,D*2); srd(a,36,42,0,S*D*2)
        a(f"s_lshl_b32 s24, s27, 15\ns_lshl_b32 s25, s10, 11\ns_add_u32 s24, s24, s25\ns_add_u32 s25, s24, 32768\nv_lshlrev_b32 v9, 4, v0\ns_lshl_b32 s26, s10, 7\nv_lshlrev_b32 v10, 3, v2")
        for tb in range(TB):
            for fp in range(NF//2):
                a(f"buffer_load_dwordx4 {vr(T+(tb*NF+2*fp)*2,4)}, v9, s[28:31], s{24+tb} offen offset:{fp*1024}")
        B=T+TB*NF*2
        for f in range(NF): a(f"buffer_load_dwordx2 {vr(B+2*f,2)}, v10, s[32:35], s26 offen offset:{f*32}")
        a("s_waitcnt vmcnt(0)")
        B2=B+2*NF
        for i in range(NF*2): a(f"v_lshlrev_b32 v{B2+2*i}, 16, v{B+i}\nv_and_b32 v{B2+2*i+1}, 0xffff0000, v{B+i}")
        for i in range(TB*NF*2):
            a(f"v_lshlrev_b32 v{ACC+2*i}, 16, v{T+i}\nv_and_b32 v{ACC+2*i+1}, 0xffff0000, v{T+i}")
        for i in range(NACC): a(f"v_add_f32 v{ACC+i}, v{ACC+i}, v{B2+i%(NF*4)}")
    if kind=='ffn1':
        RS=VTOP; VTOP+=4
        srd(a,28,4,WS_ST,S*128); srd(a,32,40,0,F*2); srd(a,36,4,WS_CS,8*F*4)
        a(f"s_lshl_b32 s24, s27, 11\nv_lshlrev_b32 v9, 7, v1\nv_lshl_add_u32 v9, v2, 5, v9\ns_add_u32 s25, s24, 4096")
        T0=F0
        for tb in range(TB):
            for hh in range(2):
                a(f"buffer_load_dwordx4 {vr(T0+tb*8+hh*4,4)}, v9, s[28:31], s{24+(tb>>1)} offen offset:{(tb&1)*2048+hh*16}")
        a(f"s_mul_i32 s24, s10, 224\ns_mul_i32 s25, s3, 112\ns_add_u32 s24, s24, s25\ns_lshl_b32 s25, s24, 2\ns_lshl_b32 s24, s24, 1\nv_lshlrev_b32 v10, 3, v2\nv_lshlrev_b32 v11, 4, v2")
        BB=T0+32; CS=BB+16
        for f in range(NF): a(f"buffer_load_dwordx2 {vr(BB+2*f,2)}, v10, s[32:35], s24 offen offset:{f*32}")
        for f in range(NF): a(f"buffer_load_dwordx4 {vr(CS+4*f,4)}, v11, s[36:39], s25 offen offset:{f*64}")
        a(f"s_waitcnt vmcnt({2*NF})")
        for tb in range(TB):
            t=T0+tb*8
            a(f"v_pk_add_f32 {vr(t,2)}, {vr(t,2)}, {vr(t+2,2)}\nv_pk_add_f32 {vr(t+4,2)}, {vr(t+4,2)}, {vr(t+6,2)}")
        for tb in range(TB):
            t=T0+tb*8
            a(f"v_pk_add_f32 {vr(t,2)}, {vr(t,2)}, {vr(t+4,2)}")
        for sw in ('16','32'):
            for tb in range(TB):
                t=T0+tb*8; a(f"v_mov_b32 v{t+2}, v{t}\nv_mov_b32 v{t+3}, v{t+1}")
            a("s_nop 1")
            for tb in range(TB):
                t=T0+tb*8; a(f"v_permlane{sw}_swap_b32 v{t}, v{t+2}\nv_permlane{sw}_swap_b32 v{t+1}, v{t+3}")
            a("s_nop 1")
            for tb in range(TB):
                t=T0+tb*8; a(f"v_pk_add_f32 {vr(t,2)}, {vr(t,2)}, {vr(t+2,2)}")
        a(f"s_mov_b32 s24, {f2u(1.0/D)}")
        for tb in range(TB):
            t=T0+tb*8
            a(f"""v_mul_f32 v{t}, s24, v{t}
v_mul_f32 v{t+1}, s24, v{t+1}
v_fma_f32 v{t+1}, -v{t}, v{t}, v{t+1}
v_max_f32 v{t+1}, 0, v{t+1}
v_add_f32 v{t+1}, {f2u(1e-5)}, v{t+1}
v_rsq_f32 v{RS+tb}, v{t+1}
v_sqrt_f32 v{t+1}, v{t+1}""")
        a("s_waitcnt vmcnt(0)")
        for f in range(NF):
            for hh in range(2):
                a(f"v_lshlrev_b32 v12, 16, v{BB+2*f+hh}\nv_and_b32 v13, 0xffff0000, v{BB+2*f+hh}")
                for tb in range(TB):
                    t=T0+tb*8
                    for e in range(2): a(f"v_mul_f32 v{acc(tb,f)+2*hh+e}, v{12+e}, v{t+1}")
                for tb in range(TB):
                    t=T0+tb*8
                    for e in range(2): a(f"v_fma_f32 v{acc(tb,f)+2*hh+e}, -v{t}, v{CS+4*f+2*hh+e}, v{acc(tb,f)+2*hh+e}")
    stamp(a,1)
    a(f"s_mov_b32 s22, 0\ns_mov_b32 s23, {nst}\ns_barrier")
    stamp(a,2)
    a.ext(reads(F0,0))
    a(f".p2align 5\n{name}_loop:")
    a(f"s_add_u32 s22, s22, {STG}\ns_cmp_eq_u32 s22, {lds}\ns_cselect_b32 s22, 0, s22\ns_sub_u32 s23, s23, 1\ns_waitcnt lgkmcnt(0)")
    a.ext(interleave(mfmas(F0),reads(F1,1),per=(2 if KP==2 else 1)))
    a("v_add_u32 v6, s22, v3\nv_add_u32 v7, s22, v4\nv_add_u32 v8, s22, v5\ns_cmp_lg_u32 s23, 0\ns_waitcnt lgkmcnt(0)\ns_barrier")
    a.ext(interleave(mfmas(F1),reads(F0,0),per=(2 if KP==2 else 1)))
    a(f"s_cbranch_scc1 {name}_loop")
    stamp(a,3)
    a("s_waitcnt lgkmcnt(0)\ns_nop 7")
    P=F0
    def pack(dst,s0,s1):
        return [f"v_cvt_pk_bf16_f32 v{dst}, v{s0}, v{s0+1}",f"v_cvt_pk_bf16_f32 v{dst+1}, v{s0+2}, v{s0+3}",
                f"v_cvt_pk_bf16_f32 v{dst+2}, v{s1}, v{s1+1}",f"v_cvt_pk_bf16_f32 v{dst+3}, v{s1+2}, v{s1+3}"]
    if kind=='qkv':
        srd(a,28,4,WS_Q,4*MB); srd(a,32,4,WS_KV,8*MB)
        a(f"""s_lshl_b32 s24, s10, 1
s_add_u32 s24, s24, s3
s_lshl_b32 s24, s24, 6
s_lshr_b32 s25, s27, 1
s_add_u32 s24, s24, s25
s_lshl_b32 s25, s24, 12
s_lshl_b32 s24, s24, 11
s_add_u32 s26, s25, 4096
v_lshlrev_b32 v9, 9, v2
v_lshl_add_u32 v10, v1, 4, v9
v_lshrrev_b32 v11, 3, v1
v_lshlrev_b32 v11, 8, v11
v_and_b32 v12, 7, v1
v_lshl_add_u32 v11, v12, 4, v11
v_add_u32 v11, v11, v9
s_mov_b32 s44, {f2u(DH**-0.5*1.4426950408889634)}
s_mov_b32 s45, s44""")
        for tb in range(TB):
            a.ext(pack(P+tb*4,acc(tb,2),acc(tb,3)))
            a(f"buffer_store_dwordx4 {vr(P+tb*4,4)}, v11, s[32:35], s{25+(tb>>1)} offen offset:{(tb&1)*128}")
        for kb in range(2):
            for e in range(2):
                d=P+16+(kb*2+e)*4
                a.ext(pack(d,acc(2*kb,4+e),acc(2*kb+1,4+e)))
                a(f"buffer_store_dwordx4 {vr(d,4)}, v10, s[32:35], s{25+kb} offen offset:{2048+e*256}")
        for tb in range(TB):
            for i in range(4): a(f"v_pk_mul_f32 {vr(acc(tb,0)+2*i,2)}, {vr(acc(tb,0)+2*i,2)}, s[44:45]")
            d=P+32+tb*4
            a.ext(pack(d,acc(tb,0),acc(tb,1)))
            a(f"buffer_store_dwordx4 {vr(d,4)}, v10, s[28:31], s24 offen offset:{(tb>>1)*2048+(tb&1)*256}")
    if kind=='wo':
        srd(a,28,4,WS_H,4*MB); srd(a,32,4,WS_ST,S*128)
        a(f"s_lshl_b32 s24, s27, 15\ns_lshl_b32 s25, s10, 11\ns_add_u32 s24, s24, s25\ns_add_u32 s25, s24, 32768\nv_lshlrev_b32 v9, 4, v0")
        for tb in range(TB):
            for fp in range(2):
                d=P+(tb*2+fp)*4
                a.ext(pack(d,acc(tb,2*fp),acc(tb,2*fp+1)))
                a(f"buffer_store_dwordx4 {vr(d,4)}, v9, s[28:31], s{24+tb} offen offset:{fp*1024}")
        Q=P+16
        for tb in range(TB):
            a(f"v_mov_b32 v{Q+4*tb}, 0\nv_mov_b32 v{Q+4*tb+1}, 0")
            for i in range(8):
                a(f"""v_lshlrev_b32 v12, 16, v{P+tb*8+i}
v_and_b32 v13, 0xffff0000, v{P+tb*8+i}
v_add_f32 v{Q+4*tb}, v{Q+4*tb}, v12
v_fmac_f32 v{Q+4*tb+1}, v12, v12
v_add_f32 v{Q+4*tb}, v{Q+4*tb}, v13
v_fmac_f32 v{Q+4*tb+1}, v13, v13""")
        for sw in ('16','32'):
            for tb in range(TB):
                t=Q+4*tb; a(f"v_mov_b32 v{t+2}, v{t}\nv_mov_b32 v{t+3}, v{t+1}")
            a("s_nop 1")
            for tb in range(TB):
                t=Q+4*tb; a(f"v_permlane{sw}_swap_b32 v{t}, v{t+2}\nv_permlane{sw}_swap_b32 v{t+1}, v{t+3}")
            a("s_nop 1")
            for tb in range(TB):
                t=Q+4*tb; a(f"v_pk_add_f32 {vr(t,2)}, {vr(t,2)}, {vr(t+2,2)}")
        a(f"s_lshl_b32 s24, s27, 11\ns_lshl_b32 s25, s10, 3\ns_add_u32 s24, s24, s25\nv_lshlrev_b32 v9, 7, v1\ns_mov_b64 exec, 0xffff")
        for tb in range(TB): a(f"buffer_store_dwordx2 {vr(Q+4*tb,2)}, v9, s[32:35], s24 offen offset:{tb*2048}")
    if kind=='ffn2':
        a(f"""s_lshl_b32 s24, s27, 15
s_lshl_b32 s25, s10, 7
s_add_u32 s24, s24, s25
s_add_u32 s25, s24, 32768
v_lshlrev_b32 v9, 11, v1
v_and_b32 v10, 1, v2
v_lshl_add_u32 v9, v10, 5, v9
v_lshrrev_b32 v10, 1, v2
v_lshl_add_u32 v9, v10, 4, v9""")
        for tb in range(TB):
            for fp in range(2):
                a.ext(pack(P+(tb*2+fp)*4,acc(tb,2*fp),acc(tb,2*fp+1)))
        a("s_nop 1")
        for tb in range(TB):
            for fp in range(2):
                d=P+(tb*2+fp)*4
                a(f"v_permlane16_swap_b32 v{d}, v{d+2}\nv_permlane16_swap_b32 v{d+1}, v{d+3}")
                a(f"buffer_store_dwordx4 {vr(d,4)}, v9, s[36:39], s{24+tb} offen offset:{fp*64}")
    if kind=='ffn1':
        srd(a,28,4,WS_G,14*MB)
        c0=-2*1.4426950408889634*0.7978845608028654; c1=c0*0.044715
        a(f"""s_mov_b32 s44, {f2u(c1)}
s_mov_b32 s45, s44
v_mov_b32 v12, {f2u(c0)}
v_mov_b32 v13, v12
s_mul_i32 s24, s27, {112*1024}
s_mul_i32 s25, s10, {7*1024}
s_add_u32 s24, s24, s25
s_mul_i32 s25, s3, {4*1024}
s_add_u32 s48, s24, s25
s_add_u32 s52, s24, {3*1024}
v_lshlrev_b32 v9, 4, v0
s_lshl_b32 s25, s3, 3
v_add_u32 v10, s25, v9""")
        for tb in range(1,TB): a(f"s_add_u32 s{48+tb}, s48, {tb*112*1024}\ns_add_u32 s{52+tb}, s52, {tb*112*1024}")
        def gelu(x,tb,t):
            r=[]
            for e in (0,2): r.append(f"v_pk_mul_f32 {vr(x+e,2)}, {vr(x+e,2)}, {vr(RS+(tb&~1),2)} op_sel:[0,{tb&1}] op_sel_hi:[1,{tb&1}]")
            for e in (0,2): r.append(f"v_pk_mul_f32 {vr(t+e,2)}, {vr(x+e,2)}, {vr(x+e,2)}")
            for e in (0,2): r.append(f"v_pk_fma_f32 {vr(t+e,2)}, {vr(t+e,2)}, s[44:45], v[12:13]")
            for e in (0,2): r.append(f"v_pk_mul_f32 {vr(t+e,2)}, {vr(t+e,2)}, {vr(x+e,2)}")
            for e in range(4): r.append(f"v_exp_f32 v{t+e}, v{t+e}")
            for e in (0,2): r.append(f"v_pk_add_f32 {vr(t+e,2)}, {vr(t+e,2)}, 1.0 op_sel_hi:[1,0]")
            for e in range(4): r.append(f"v_rcp_f32 v{t+e}, v{t+e}")
            for e in (0,2): r.append(f"v_pk_mul_f32 {vr(x+e,2)}, {vr(x+e,2)}, {vr(t+e,2)}")
            return r
        assert RS%2==0
        for wn in range(2):
            if wn==0: a(f"s_cmp_eq_u32 s3, 1\ns_cbranch_scc1 {name}_ep1")
            else: a(f"{name}_ep1:")
            cnt=0
            for tb in range(TB):
                f0=wn
                for fp in range(3):
                    g0=gelu(acc(tb,f0+2*fp),tb,P); g1=gelu(acc(tb,f0+2*fp+1),tb,P+4)
                    for x,y in zip(g0,g1): a(x); a(y)
                    d=P+8+(cnt%4)*4; cnt+=1
                    a.ext(pack(d,acc(tb,f0+2*fp),acc(tb,f0+2*fp+1)))
                    a(f"buffer_store_dwordx4 {vr(d,4)}, v9, s[28:31], s{48+tb} offen offset:{fp*1024}")
            fo=6 if wn==0 else 0
            for tb in (0,2):
                g0=gelu(acc(tb,fo),tb,P); g1=gelu(acc(tb+1,fo),tb+1,P+4)
                for x,y in zip(g0,g1): a(x); a(y)
                d=P+8+(cnt%4)*4; cnt+=1
                a.ext(pack(d,acc(tb,fo),acc(tb+1,fo)))
                a(f"buffer_store_dwordx2 {vr(d,2)}, v10, s[28:31], s{52+tb} offen\nbuffer_store_dwordx2 {vr(d+2,2)}, v10, s[28:31], s{53+tb} offen")
            if wn==0:
                stamp(a,4); stamp_out(a,KID,5); a("s_endpgm")
    stamp(a,4); stamp_out(a,KID,5)
    a(f"{name}_end:\ns_endpgm")
    assert VTOP<=256, VTOP
    return dict(name=name,text=khead(name)+a.txt(),desc=kdesc(name,VTOP),grid=256,block=512,lds=lds)
```

```python
from common import *
from gemm import f2u

def xreduce(a, regs, tmp, op="v_add_f32", sws=('16','32')):
    for sw in sws:
        for r,t in zip(regs,tmp): a(f"v_mov_b32 v{t}, v{r}")
        a("s_nop 1")
        for r,t in zip(regs,tmp): a(f"v_permlane{sw}_swap_b32 v{r}, v{t}")
        a("s_nop 1")
        for r,t in zip(regs,tmp): a(f"{op} v{r}, v{r}, v{t}")

def prefetch(a, ptr, size, nwg, wgreg, nthreads, vbase, tid='v0'):
    per=size//nwg; n=per//(nthreads*16); assert n*nthreads*16*nwg==size
    srd(a,12,ptr,0,size)
    a(f"s_mul_i32 s20, s{wgreg}, {per}\nv_lshlrev_b32 v1, 4, {tid}")
    for i in range(n):
        a(f"buffer_load_dwordx4 {vr(vbase+4*(i%8),4)}, v1, s[12:15], s20 offen\ns_add_u32 s20, s20, {nthreads*16}")

def ln1(name):
    a=A()
    a(f"""s_cmp_ge_u32 s2, 256
s_cbranch_scc1 {name}_end
s_load_dwordx4 s[4:7], s[0:1], {KA_X}
s_load_dwordx2 s[8:9], s[0:1], {KA_WS}
s_lshr_b32 s3, s2, 1
s_and_b32 s24, s2, 1
s_cmp_eq_u32 s24, 0
s_cbranch_scc1 {name}_ln
s_waitcnt lgkmcnt(0)""")
    prefetch(a,6,D*3*D*2,128,3,256,8)
    a(f"s_waitcnt vmcnt(0)\ns_endpgm\n{name}_ln:")
    X=16; U=48
    stamp(a,-1); stamp(a,0)
    a(f"""v_lshrrev_b32 v1, 6, v0
v_and_b32 v0, 63, v0
v_and_b32 v2, 15, v0
v_readfirstlane_b32 s10, v1
v_lshrrev_b32 v3, 4, v0
v_lshlrev_b32 v4, 11, v2
v_lshl_add_u32 v4, v3, 4, v4
s_lshl_b32 s20, s3, 15
s_lshl_b32 s21, s10, 9
s_add_u32 s21, s21, s20
s_lshl_b32 s22, s10, 13
s_add_u32 s22, s22, s20
s_add_u32 s23, s22, 4096
s_waitcnt lgkmcnt(0)""")
    srd(a,12,4,0,S*D*2);
    for i in range(8): a(f"buffer_load_dwordx4 {vr(X+4*i,4)}, v4, s[12:15], s21 offen offset:{i*64}")
    srd(a,16,8,WS_XN,4*MB)
    a(f"""v_lshlrev_b32 v5, 4, v2
s_lshl_b32 s24, s10, 2
v_add_u32 v6, s24, v5
v_lshlrev_b32 v7, 4, v0
v_mov_b32 v8, 0
v_mov_b32 v9, 0""")
    for i in range(8):
        a(f"s_waitcnt vmcnt({7-i})")
        for j in range(4):
            r=4*i+j
            a(f"v_lshlrev_b32 v{U+2*r}, 16, v{X+r}\nv_and_b32 v{U+2*r+1}, 0xffff0000, v{X+r}\nv_pk_add_f32 v[8:9], v[8:9], {vr(U+2*r,2)}")
    def wgreduce(off):
        a("v_add_f32 v8, v8, v9")
        xreduce(a,[8],[9])
        a(f"""ds_write_b32 v6, v8 offset:{off}
s_waitcnt lgkmcnt(0)
s_barrier
ds_read_b128 v[12:15], v5 offset:{off}
s_waitcnt lgkmcnt(0)
v_add_f32 v12, v12, v13
v_add_f32 v14, v14, v15
v_add_f32 v12, v12, v14""")
    stamp(a,1)
    wgreduce(0)
    stamp(a,2)
    a(f"v_mul_f32 v10, {f2u(-1.0/D)}, v12\nv_mov_b32 v8, 0\nv_mov_b32 v9, 0")
    for r in range(32):
        a(f"v_pk_add_f32 {vr(U+2*r,2)}, {vr(U+2*r,2)}, v[10:11] op_sel_hi:[1,0]")
    for r in range(32):
        a(f"v_pk_fma_f32 v[8:9], {vr(U+2*r,2)}, {vr(U+2*r,2)}, v[8:9]")
    wgreduce(256)
    stamp(a,3)
    a(f"v_mov_b32 v13, {f2u(1e-5)}\nv_fmac_f32 v13, {f2u(1.0/D)}, v12\nv_rsq_f32 v10, v13\ns_nop 0")
    for i in range(8):
        for j in range(4):
            r=4*i+j
            a(f"v_pk_mul_f32 {vr(U+2*r,2)}, {vr(U+2*r,2)}, v[10:11] op_sel_hi:[1,0]")
        for j in range(4):
            r=4*i+j
            a(f"v_cvt_pk_bf16_f32 v{X+r}, v{U+2*r}, v{U+2*r+1}")
        a(f"buffer_store_dwordx4 {vr(X+4*i,4)}, v7, s[16:19], s{22+(i>>2)} offen offset:{(i&3)*1024}")
    stamp(a,4); stamp_out(a,0,5,8,'s10')
    a(f"{name}_end:\ns_endpgm")
    return dict(name=name,text=khead(name)+a.txt(),desc=kdesc(name,112,96),grid=256,block=256,lds=512)

NCS=56; NPF=36
def attn(name):
    a=A()
    G=256+NCS+NPF
    a(f"""s_cmp_ge_u32 s2, {G}
s_cbranch_scc1 {name}_end
s_load_dwordx2 s[4:5], s[0:1], {KA_WS}
s_cmp_lt_u32 s2, 256
s_cbranch_scc1 {name}_att
s_load_dwordx2 s[6:7], s[0:1], {KA_W1}
s_load_dwordx2 s[8:9], s[0:1], {KA_WO}
s_load_dwordx2 s[10:11], s[0:1], {KA_W2}
s_sub_u32 s3, s2, 256
s_waitcnt lgkmcnt(0)
s_cmp_lt_u32 s3, {NCS}
s_cbranch_scc1 {name}_cs
s_sub_u32 s3, s3, {NCS}
s_cmp_lt_u32 s3, 8
s_cbranch_scc0 {name}_pf2""")
    prefetch(a,8,D*D*2,8,3,512,8)
    a(f"s_waitcnt vmcnt(0)\ns_endpgm\n{name}_pf2:\ns_sub_u32 s3, s3, 8")
    prefetch(a,10,F*D*2,28,3,512,8)
    a(f"s_waitcnt vmcnt(0)\ns_endpgm\n{name}_cs:")
    srd(a,12,6,0,D*F*2); srd(a,16,4,WS_CS,F*4)
    a(f"""v_lshrrev_b32 v1, 3, v0
v_and_b32 v2, 7, v0
s_movk_i32 s24, {F*2}
v_mul_lo_u32 v3, v1, s24
v_lshl_add_u32 v3, v2, 4, v3
s_lshl_b32 s20, s3, 7""")
    for i in range(16): a(f"buffer_load_dwordx4 {vr(16+4*i,4)}, v3, s[12:15], s20 offen\ns_add_u32 s20, s20, {64*F*2}")
    for j in range(8): a(f"v_mov_b32 v{8+j}, 0")
    for i in range(16):
        a(f"s_waitcnt vmcnt({15-i})")
        for j in range(4):
            a(f"v_lshlrev_b32 v4, 16, v{16+4*i+j}\nv_and_b32 v5, 0xffff0000, v{16+4*i+j}\nv_pk_add_f32 {vr(8+2*j,2)}, {vr(8+2*j,2)}, v[4:5]")
    a(f"""v_lshlrev_b32 v4, 5, v0
ds_write_b128 v4, v[8:11]
ds_write_b128 v4, v[12:15] offset:16
s_waitcnt lgkmcnt(0)
s_barrier
v_cmp_gt_u32 vcc, 64, v0
s_and_saveexec_b64 s[24:25], vcc
s_cbranch_execz {name}_end
v_lshlrev_b32 v4, 2, v0""")
    for i in range(64): a(f"ds_read_b32 v{16+i}, v4 offset:{i*256}")
    a("s_waitcnt lgkmcnt(0)")
    for i in range(1,64): a(f"v_add_f32 v16, v16, v{16+i}")
    a(f"s_lshl_b32 s20, s3, 8\nbuffer_store_dword v16, v4, s[16:19], s20 offen\ns_endpgm")
    SA=16; SB=32; O=48; NM=64; Q=80; Kf=88; Vf=96; P=104; L=112; ON=116; VT=120
    a(f"""{name}_att:
v_lshrrev_b32 v1, 6, v0
v_and_b32 v0, 63, v0
s_and_b32 s24, s2, 7
v_readfirstlane_b32 s8, v1
s_lshr_b32 s25, s2, 3
s_lshl_b32 s9, s24, 2
s_lshr_b32 s26, s25, 3
s_add_u32 s9, s9, s26
s_and_b32 s25, s25, 7
s_lshl_b32 s10, s25, 3
s_add_u32 s10, s10, s8
v_lshlrev_b32 v2, 4, v0
s_lshl_b32 s24, s9, 18
s_lshl_b32 s44, s8, 11
v_add_u32 v3, s44, v2
s_mov_b32 s40, 0
s_waitcnt lgkmcnt(0)
s_add_u32 s12, s4, s24
s_addc_u32 s13, s5, 0
s_add_u32 s12, s12, {hex(WS_KV)}
s_addc_u32 s13, s13, 0
s_mov_b32 s14, 0x40000
s_mov_b32 s15, 0x20000""")
    stamp(a,-1); stamp(a,0)
    srd(a,16,4,WS_Q,4*MB)
    a(f"""s_lshl_b32 s24, s9, 6
s_add_u32 s24, s24, s10
s_lshl_b32 s24, s24, 11
buffer_load_dwordx4 {vr(Q,4)}, v2, s[16:19], s24 offen
buffer_load_dwordx4 {vr(Q+4,4)}, v2, s[16:19], s24 offen offset:1024""")
    srd(a,16,4,WS_O,4*MB)
    a(f"""v_lshrrev_b32 v4, 4, v0
v_lshrrev_b32 v5, 2, v0
v_xor_b32 v4, v4, v5
v_and_b32 v4, 1, v4
v_cmp_eq_u32 vcc, 0, v4
v_mov_b32 v5, 0x3f803f80
s_nop 1
v_cndmask_b32 v{ON}, 0, v5, vcc
v_cndmask_b32 v{ON+1}, 0, v5, vcc
v_cndmask_b32 v{ON+2}, 0, v5, vcc
v_cndmask_b32 v{ON+3}, 0, v5, vcc""")
    def dma():
        return ["s_add_u32 m0, s22, s44","s_add_u32 s22, s22, 0x4000",
                "buffer_load_dwordx4 v3, s[12:15], s20 offen lds","buffer_load_dwordx4 v3, s[12:15], s20 offen offset:1024 lds",
                "s_add_u32 s20, s20, 0x4000","s_and_b32 s22, s22, 0xffff"]
    a(f"{name}_restart:\ns_mov_b32 s20, 0\ns_mov_b32 s22, 0")
    for i in range(3): a.ext(dma())
    for i in range(16): a(f"v_mov_b32 v{O+i}, 0")
    for i in range(4): a(f"v_mov_b32 v{L+i}, 0\nv_mov_b32 v{P+4+i}, 0\nv_mov_b32 v{Vf+4+i}, 0")
    a(f"""v_mov_b32 v6, v2
v_add_u32 v7, 0x4000, v2
s_mov_b32 s23, 16
s_mov_b32 s21, 0x4000
s_waitcnt vmcnt(4)
s_barrier
ds_read_b128 {vr(Kf,4)}, v6
ds_read_b128 {vr(Kf+4,4)}, v6 offset:1024
s_cmp_lg_u32 s40, 0
s_cbranch_scc1 {name}_havemax
s_waitcnt lgkmcnt(0)
{mf32(SA,Kf,Q,'0')}
{mf32(SA,Kf+4,Q+4)}
s_nop 15
v_max3_f32 v8, v{SA}, v{SA+1}, v{SA+2}""")
    for i in range(3,15,2): a(f"v_max3_f32 v8, v{SA+i}, v{SA+i+1}, v8")
    a(f"v_max_f32 v8, v{SA+15}, v8")
    xreduce(a,[8],[9],"v_max_f32",('32',))
    a(f"{name}_havemax:")
    stamp(a,1); stamp(a,2)
    for i in range(16): a(f"v_sub_f32 v{NM+i}, 0, v8")
    a(f"""s_waitcnt lgkmcnt(0)
s_nop 0
{mf32(SA,Kf,Q,vr(NM,16))}
{mf32(SA,Kf+4,Q+4)}
ds_read_b128 {vr(Kf,4)}, v6 offset:4096
ds_read_b128 {vr(Kf+4,4)}, v6 offset:{4096+1024}
ds_read_b128 {vr(Vf,4)}, v6 offset:2048
s_waitcnt lgkmcnt(0)
s_nop 7
.p2align 5
{name}_loop:""")
    def rd(dst,t,off):
        return f"ds_read_b128 {vr(dst,4)}, v{6 if t<4 else 7} offset:{(t%4)*4096+off}"
    ex=lambda s,i: f"v_exp_f32 v{s+i}, v{s+i}"
    cv=lambda d,s: f"v_cvt_pk_bf16_f32 v{d}, v{s}, v{s+1}"
    for t in range(4):
        C,N=(SA,SB) if t%2==0 else (SB,SA)
        if t==2:
            a("s_waitcnt vmcnt(2)\ns_barrier"); a.ext(dma())
        a("s_waitcnt lgkmcnt(3)")
        a(mf32(N,Kf,Q,vr(NM,16))); a(rd(Kf,t+2,0))
        for i in range(0,4): a(ex(C,i))
        a("s_waitcnt lgkmcnt(3)")
        a(mf32(O,Vf+4,P+4)); a(rd(Vf+4,t,3072))
        for i in range(4,6): a(ex(C,i))
        a(mf16(L,ON,P+4))
        for i in range(6,8): a(ex(C,i))
        a(cv(P,C)); a(cv(P+1,C+2))
        a("s_waitcnt lgkmcnt(3)")
        a(mf32(N,Kf+4,Q+4)); a(rd(Kf+4,t+2,1024))
        a(cv(P+2,C+4)); a(cv(P+3,C+6))
        for i in range(8,11): a(ex(C,i))
        a("s_waitcnt lgkmcnt(3)")
        a(mf32(O,Vf,P)); a(rd(Vf,t+1,2048))
        for i in range(11,14): a(ex(C,i))
        a(mf16(L,ON,P))
        for i in range(14,16): a(ex(C,i))
        if t==3: a("s_add_u32 s21, s21, 0x4000\ns_and_b32 s21, s21, 0xffff\ns_sub_u32 s23, s23, 1\ns_cmp_lg_u32 s23, 0\nv_mov_b32 v6, v7")
        a(cv(P+4,C+8)); a(cv(P+5,C+10)); a(cv(P+6,C+12)); a(cv(P+7,C+14))
        if t==3: a("v_add_u32 v7, s21, v2")
    a(f"""s_cbranch_scc1 {name}_loop
s_waitcnt lgkmcnt(0)
{mf32(O,Vf+4,P+4)}
{mf16(L,ON,P+4)}
s_waitcnt vmcnt(0)
s_nop 15
s_cmp_lg_u32 s40, 0
s_cbranch_scc1 {name}_fin
v_mov_b32 v8, 0""")
    stamp(a,3)
    for i in range(16): a(f"v_fma_f32 v8, v{O+i}, 0, v8")
    a(f"""v_add_f32 v8, v8, v{L}
v_cmp_ngt_f32 vcc, {f2u(2.0**60)}, v8
s_barrier
s_cmp_lg_u64 vcc, 0
s_cselect_b32 s24, 1, 0
v_mov_b32 v9, s24
s_lshl_b32 s25, s8, 2
v_mov_b32 v10, s25
ds_write_b32 v10, v9
s_waitcnt lgkmcnt(0)
s_barrier
v_and_b32 v10, 7, v0
v_lshlrev_b32 v10, 2, v10
ds_read_b32 v9, v10
s_waitcnt lgkmcnt(0)
v_cmp_ne_u32 vcc, 0, v9
s_nop 1
s_cmp_eq_u64 vcc, 0
s_cbranch_scc1 {name}_fin
s_barrier
s_mov_b32 s40, 1
s_mov_b32 s20, 0
v_mov_b32 v8, 0xff800000
{name}_mx:
buffer_load_dwordx4 {vr(Kf,4)}, v2, s[12:15], s20 offen
buffer_load_dwordx4 {vr(Kf+4,4)}, v2, s[12:15], s20 offen offset:1024
s_add_u32 s20, s20, 0x1000
s_waitcnt vmcnt(0)
{mf32(SA,Kf,Q,'0')}
{mf32(SA,Kf+4,Q+4)}
s_nop 15""")
    for i in range(0,16,2): a(f"v_max3_f32 v8, v{SA+i}, v{SA+i+1}, v8")
    a(f"s_cmp_lt_u32 s20, 0x40000\ns_cbranch_scc1 {name}_mx")
    xreduce(a,[8],[9],"v_max_f32",('32',))
    a(f"""s_branch {name}_restart
{name}_fin:
v_rcp_f32 v8, v{L}
s_lshl_b32 s24, s10, 16
s_lshl_b32 s25, s9, 10
s_add_u32 s24, s24, s25
v_bfe_u32 v9, v0, 4, 1
v_lshlrev_b32 v9, 15, v9
v_and_b32 v10, 15, v0
v_lshl_add_u32 v9, v10, 4, v9
v_lshrrev_b32 v10, 5, v0
v_lshl_add_u32 v9, v10, 8, v9""")
    for i in range(8): a(f"v_pk_mul_f32 {vr(O+2*i,2)}, {vr(O+2*i,2)}, v[8:9] op_sel_hi:[1,0]")
    for i in range(8): a(cv(P+i,O+2*i))
    a(f"""buffer_store_dwordx4 {vr(P,4)}, v9, s[16:19], s24 offen
buffer_store_dwordx4 {vr(P+4,4)}, v9, s[16:19], s24 offen offset:512""")
    stamp(a,4); stamp_out(a,2,5)
    a(f"{name}_end:\ns_endpgm")
    return dict(name=name,text=khead(name)+a.txt(),desc=kdesc(name,VT,96),grid=G,block=512,lds=65536)
```

```python
S=2048; D=1024; F=3584; H=32; DH=32
MB=1<<20
WS_XN=0*MB; WS_Q=4*MB; WS_KV=8*MB; WS_O=16*MB; WS_H=20*MB; WS_G=24*MB
WS_ST=40*MB
WS_WQ=48*MB; WS_WO=54*MB; WS_W1=56*MB; WS_W2=64*MB
WS_CS=41*MB
KA_X,KA_WQKV,KA_WO,KA_BX,KA_W1,KA_B1,KA_W2,KA_B2,KA_OUT,KA_DBG,KA_WS=[8*i for i in range(11)]

class A:
    def __init__(s): s.l=[]
    def __call__(s,t):
        for x in t.strip('\n').split('\n'):
            x=x.strip()
            if not x: continue
            s.l.append(x if x.endswith(':') else '  '+x)
    def ext(s,ls):
        for x in ls: s(x)
    def txt(s): return '\n'.join(s.l)+'\n'

def vr(b,n=1): return f"v{b}" if n==1 else f"v[{b}:{b+n-1}]"
def sr(b,n=1): return f"s{b}" if n==1 else f"s[{b}:{b+n-1}]"
def mf16(d,a,b,c=None):
    c=vr(d,4) if c is None else c
    return f"v_mfma_f32_16x16x32_bf16 {vr(d,4)}, {vr(a,4)}, {vr(b,4)}, {c}"
def mf32(d,a,b,c=None):
    c=vr(d,16) if c is None else c
    return f"v_mfma_f32_32x32x16_bf16 {vr(d,16)}, {vr(a,4)}, {vr(b,4)}, {c}"
def srd(a,dst,base,off,size):
    if off:
        a(f"s_add_u32 s{dst}, s{base}, {hex(off)}\ns_addc_u32 s{dst+1}, s{base+1}, 0")
    else:
        a(f"s_mov_b32 s{dst}, s{base}\ns_mov_b32 s{dst+1}, s{base+1}")
    a(f"s_mov_b32 s{dst+2}, {hex(size)}\ns_mov_b32 s{dst+3}, 0x20000")
def interleave(mains, fills, start=0, per=1):
    out=[]; j=0
    for i,m in enumerate(mains):
        out.append(m)
        if i>=start:
            out+=fills[j:j+per]; j+=per
    return out+fills[j:]
def khead(name):
    return f".globl {name}\n.p2align 8\n.type {name},@function\n{name}:\n"
def kdesc(name,vg,sg=96):
    acc=(vg+3)//4*4
    return f""".p2align 6
.amdhsa_kernel {name}
  .amdhsa_next_free_vgpr {vg}
  .amdhsa_next_free_sgpr {sg}
  .amdhsa_accum_offset {acc}
  .amdhsa_group_segment_fixed_size 0
  .amdhsa_kernarg_size 88
  .amdhsa_user_sgpr_count 2
  .amdhsa_user_sgpr_kernarg_segment_ptr 1
  .amdhsa_system_sgpr_workgroup_id_x 1
.end_amdhsa_kernel
"""
import os
STAMP=int(os.environ.get('STAMP','0'))
WS_TS=44*MB
def stamp(a,i):
    if STAMP: a(f"s_memtime s[{64+2*i}:{65+2*i}]" if i>=0 else "s_memrealtime s[80:81]")
def stamp_out(a,kid,n,wsreg=4,wave='s8'):
    if not STAMP: return
    a("s_waitcnt vmcnt(0)"); stamp(a,n); a("s_memrealtime s[82:83]\ns_waitcnt lgkmcnt(0)")
    a(f"s_mov_b64 exec, 1\ns_lshl_b32 s84, s2, 3\ns_add_u32 s84, s84, {wave}\ns_lshl_b32 s84, s84, 6\ns_add_u32 s84, s84, {WS_TS+kid*(1<<18)}\nv_mov_b32 v0, s84")
    for i in range(n+1): a(f"v_mov_b32 v1, s{64+2*i}\nglobal_store_dword v0, v1, s[{wsreg}:{wsreg+1}] offset:{4*i}")
    a(f"v_mov_b32 v1, s80\nglobal_store_dword v0, v1, s[{wsreg}:{wsreg+1}] offset:56\nv_mov_b32 v1, s82\nglobal_store_dword v0, v1, s[{wsreg}:{wsreg+1}] offset:60")
SC=os.environ.get('SC','sc1')

def wlane(a,dst,ldw_s,perm,t):
    a(f"""v_lshrrev_b32 v{t}, 4, v0
v_bfe_u32 v{t+1}, v0, 2, 2
v_and_b32 v{t+2}, 1, v{t}
v_and_b32 v{t+3}, 3, v0
v_lshlrev_b32 v{t+4}, 1, v{t+2}
v_xor_b32 v{t+3}, v{t+3}, v{t+4}""")
    if perm=='id':  a(f"v_lshl_add_u32 v{dst}, v{t}, 2, v{t+1}")
    if perm=='nat': a(f"v_lshl_add_u32 v{dst}, v{t}, 3, v{t+1}")
    if perm=='att': a(f"v_lshrrev_b32 v{t+4}, 1, v{t}\nv_lshlrev_b32 v{t+4}, 4, v{t+4}\nv_lshl_add_u32 v{dst}, v{t+2}, 2, v{t+1}\nv_add_u32 v{dst}, v{dst}, v{t+4}")
    a(f"v_mul_lo_u32 v{dst}, v{dst}, {ldw_s}\nv_lshl_add_u32 v{dst}, v{t+3}, 4, v{dst}")
BMUL={'id':16,'nat':4,'att':8}
def trlane(a,dst,base_s,t):
    a(f"""v_lshrrev_b32 v{dst}, 2, v0
v_lshlrev_b32 v{dst}, 6, v{dst}
v_and_b32 v{t}, 3, v0
v_lshl_add_u32 v{dst}, v{t}, 3, v{dst}
v_bfe_u32 v{t}, v0, 4, 1
v_lshl_add_u32 v{dst}, v{t}, 5, v{dst}
v_add_u32 v{dst}, {base_s}, v{dst}
v_xor_b32 v{dst+1}, 32, v{dst}""")
def trreads(dst,adr,off=0):
    return [f"ds_read_b64_tr_b16 {vr(dst+4*h+2*b,2)}, v{adr+h} offset:{off+b*1024}" for h in range(2) for b in range(2)]
```

```python
from common import *
import struct
def f2u(x): return hex(struct.unpack('<I',struct.pack('<f',x))[0])

def gemm(name, kind):
    cfg=dict(
      qkv =dict(BN=192,WM=2,TB=4,NF=6,KP=1,NS=4,K=1024,ldw=6144,wt=WS_WQ,act=WS_XN,perm='nat',xr=8),
      wo  =dict(BN=64, WM=4,TB=2,NF=4,KP=2,NS=3,K=1024,ldw=2048,wt=WS_WO, act=WS_O, perm='att',xr=4),
      ffn1=dict(BN=224,WM=2,TB=4,NF=7,KP=1,NS=3,K=1024,ldw=7168,wt=WS_W1, act=WS_H, perm='id', xr=8),
      ffn2=dict(BN=64, WM=4,TB=2,NF=4,KP=2,NS=3,K=3584,ldw=2048,wt=WS_W2, act=WS_G, perm='id', xr=4),
    )[kind]
    BN,WM,TB,NF,KP,NS,K,ldw=[cfg[k] for k in 'BN WM TB NF KP NS K ldw'.split()]
    KSS=2*KP
    KS=K//32; nst=KS//KSS
    CB=BN//32
    ACT_B=8*KSS*1024
    W_B=KSS*CB*2048
    STG=ACT_B+W_B
    lds=STG*NS
    a=A(); KID={'qkv':1,'wo':3,'ffn1':4,'ffn2':5}[kind]
    a(f"""s_cmp_ge_u32 s2, 256
s_cbranch_scc1 {name}_end
s_load_dwordx2 s[4:5], s[0:1], {KA_WS}""")
    stamp(a,-1); stamp(a,0)
    if kind=='wo': a(f"s_load_dwordx2 s[40:41], s[0:1], {KA_X}")
    if kind=='ffn1': a(f"s_load_dwordx2 s[40:41], s[0:1], {KA_B1}")
    if kind=='ffn2': a(f"s_load_dwordx4 s[40:43], s[0:1], {KA_B2}")
    xr=cfg['xr']; lx={8:3,4:2}[xr]; nxr=16//xr; lnx={2:1,4:2}[nxr]; xc=32//xr
    a(f"""v_lshrrev_b32 v1, 6, v0
v_and_b32 v0, 63, v0
s_and_b32 s24, s2, 7
v_readfirstlane_b32 s8, v1
s_lshr_b32 s25, s2, 3
s_and_b32 s26, s24, {nxr-1}
s_lshl_b32 s26, s26, {lx}
s_and_b32 s9, s25, {xr-1}
s_add_u32 s9, s9, s26
s_lshr_b32 s26, s24, {lnx}
s_mul_i32 s26, s26, {xc}
s_lshr_b32 s10, s25, {lx}
s_add_u32 s10, s10, s26
s_cmp_lt_u32 s8, 4
s_cbranch_scc1 {name}_comp""")
    nA=8*KSS//4; nW=KSS*CB*2//4;
    assert (KSS*CB*2)%4==0 or True
    totW=KSS*CB*2; assert totW%4==0, totW
    n=nA+nW
    a("s_sub_u32 s8, s8, 4")
    a(f"""s_lshl_b32 s24, s9, 3
s_lshl_b32 s25, s8, 1
s_add_u32 s24, s24, s25
s_mul_i32 s24, s24, {KS*1024}
v_lshl_add_u32 v2, v0, 4, s24
v_add_u32 v3, {KS*1024}, v2""")
    a(f"s_mul_i32 s21, s10, {KS*CB*2048}\ns_mov_b32 s20, 0\ns_mul_i32 s24, s8, {nW*1024}\nv_lshl_add_u32 v4, v0, 4, s24\nv_add_u32 v5, 4096, v4")
    a(f"s_mul_i32 s44, s8, {2*KSS*1024}\ns_mul_i32 s45, s8, {nW*1024}\ns_add_u32 s45, s45, {ACT_B}\ns_waitcnt lgkmcnt(0)")
    srd(a,12,4,cfg['act'],128*KS*1024)
    srd(a,16,4,cfg['wt'],K*ldw)
    def issue():
        r=[]
        ad=[]; wd=[]
        for i in range(2):
            for ks in range(KSS):
                ad.append((f"s_add_u32 m0, s46, {i*KSS*1024}", f"buffer_load_dwordx4 v{2+i}, s[12:15], s20 offen offset:{ks*1024} lds"))
        for j in range(nW):
            wd.append((f"s_add_u32 m0, s47, {(j//4)*4096}", f"buffer_load_dwordx4 v{4+j//4}, s[16:19], s21 offen offset:{(j%4)*1024} lds"))
        r.append("s_add_u32 s46, s22, s44\ns_add_u32 s47, s22, s45")
        last=None
        for m,l in wd+ad:
            r.append((m+"\ns_nop 0\n" if m!=last else "")+l); last=m
        r.append(f"s_add_u32 s20, s20, {KSS*1024}\ns_add_u32 s21, s21, {W_B}\ns_add_u32 s22, s22, {STG}\ns_cmp_eq_u32 s22, {lds}\ns_cselect_b32 s22, 0, s22")
        return r
    a(f"s_mov_b32 s22, 0\ns_mov_b32 s23, 0")
    a(f"{name}_ld:")
    a.ext(issue())
    a(f"""s_add_u32 s23, s23, 1
s_cmp_lg_u32 s23, 2
s_cbranch_scc1 {name}_ld0
s_waitcnt vmcnt({n})
s_barrier
{name}_ld0:
s_cmp_lt_u32 s23, {NS}
s_cbranch_scc1 {name}_ld
s_waitcnt vmcnt({(NS-2)*n})
s_barrier
s_cmp_lt_u32 s23, {nst}
s_cbranch_scc1 {name}_ld""")
    PAR=lds
    if kind=='ffn1':
        srd(a,28,4,WS_ST,16*S*8); srd(a,32,40,0,F*2); srd(a,36,4,WS_CS,8*F*4)
        a(f"""s_lshl_b32 s24, s9, 10
s_lshl_b32 s25, s8, 8
s_add_u32 s24, s24, s25
v_and_b32 v6, 31, v0
v_lshrrev_b32 v7, 5, v0
v_lshlrev_b32 v7, 17, v7
v_lshl_add_u32 v7, v6, 3, v7""")
        for i in range(8): a(f"buffer_load_dwordx2 {vr(16+2*i,2)}, v7, s[28:31], s24 offen\ns_add_u32 s24, s24, {S*8}")
        a(f"""s_mul_i32 s24, s10, 224
s_lshl_b32 s25, s8, 6
s_add_u32 s24, s24, s25
v_add_u32 v8, s24, v0
v_lshlrev_b32 v9, 1, v8
v_lshlrev_b32 v8, 2, v8
buffer_load_ushort v12, v9, s[32:35], 0 offen
s_mov_b32 s24, 0""")
        for i in range(8): a(f"buffer_load_dword v{32+i}, v8, s[36:39], s24 offen\ns_add_u32 s24, s24, {F*4}")
    for b in range(nst-NS+2, nst+1):
        rem=max(nst-1-b,0)
        ex=17 if (kind=='ffn1' and b<nst) else 0
        a(f"s_waitcnt vmcnt({rem*n+ex})")
        if kind=='ffn1' and b==nst:
            for i in range(1,8): a(f"v_pk_add_f32 v[16:17], v[16:17], {vr(16+2*i,2)}\nv_add_f32 v32, v32, v{32+i}")
            a(f"""v_mov_b32 v18, v16
v_mov_b32 v19, v17
s_nop 1
v_permlane32_swap_b32 v16, v18
v_permlane32_swap_b32 v17, v19
s_mov_b32 s24, {f2u(1.0/D)}
s_mov_b32 s25, s24
v_pk_add_f32 v[16:17], v[16:17], v[18:19]
v_pk_mul_f32 v[16:17], v[16:17], s[24:25]
v_fma_f32 v17, -v16, v16, v17
v_max_f32 v17, 0, v17
v_add_f32 v17, {f2u(1e-5)}, v17
v_rsq_f32 v18, v17
s_lshl_b32 s24, s8, 8
s_add_u32 s24, s24, {PAR}
v_mul_f32 v19, v16, v18
v_sub_f32 v19, 0, v19
v_lshl_add_u32 v6, v6, 3, s24
ds_write_b64 v6, v[18:19]
v_lshlrev_b32 v12, 16, v12
v_lshl_add_u32 v6, v0, 2, s24
ds_write_b32 v6, v12 offset:1024
ds_write_b32 v6, v32 offset:2048
s_waitcnt lgkmcnt(0)""")
        a("s_barrier")
    a("s_endpgm")
    a(f"{name}_comp:")
    NACC=TB*NF*4; FR=KP*(TB+NF)*4
    ACC=16; F0=ACC+NACC; F1=F0+FR; VTOP=F1+FR
    acc=lambda tb,f: ACC+(tb*NF+f)*4
    fa=lambda Fb,kp,tb: Fb+kp*(TB+NF)*4+tb*4
    fw=lambda Fb,kp,f: Fb+kp*(TB+NF)*4+(TB+f)*4
    if WM==2: a("s_lshr_b32 s11, s8, 1\ns_and_b32 s3, s8, 1")
    else: a("s_mov_b32 s11, s8\ns_mov_b32 s3, 0")
    a(f"""v_and_b32 v1, 15, v0
v_lshrrev_b32 v2, 4, v0
s_mul_i32 s24, s11, {TB*KSS*1024}
v_lshl_add_u32 v3, v0, 4, s24
s_mul_i32 s24, s3, {NF*1024}
s_add_u32 s24, s24, {ACT_B}
v_lshl_add_u32 v4, v0, 4, s24
v_mov_b32 v6, v3
v_mov_b32 v7, v4""")
    def reads(Fb,ph):
        r=[]
        for kp in range(KP):
            ks=ph*KP+kp
            ra=[f"ds_read_b128 {vr(fa(Fb,kp,tb),4)}, v6 offset:{(tb*KSS+ks)*1024}" for tb in range(TB)]
            rw=[f"ds_read_b128 {vr(fw(Fb,kp,f),4)}, v7 offset:{(ks*CB*2+f)*1024}" for f in range(NF)]
            r+=rw[:1]+ra+rw[1:]
        return r
    def mfmas(Fb):
        r=[]
        for kp in range(KP):
            for f in range(NF):
                for tb in range(TB):
                    if kind=='qkv' and f>=4: r.append(mf16(acc(tb,f),fa(Fb,kp,tb),fw(Fb,kp,f)))
                    else: r.append(mf16(acc(tb,f),fw(Fb,kp,f),fa(Fb,kp,tb)))
        return r
    a(f"s_lshl_b32 s27, s9, 3\ns_mul_i32 s24, s11, {TB}\ns_add_u32 s27, s27, s24\ns_waitcnt lgkmcnt(0)")
    T=F1
    if kind=='qkv':
        for i in range(NACC): a(f"v_mov_b32 v{ACC+i}, 0")
    if kind=='wo':
        srd(a,28,40,0,S*D*2)
        a(f"s_lshl_b32 s24, s27, 15\ns_lshl_b32 s25, s10, 7\ns_add_u32 s24, s24, s25\nv_lshlrev_b32 v9, 11, v1\nv_lshl_add_u32 v9, v2, 3, v9\ns_add_u32 s25, s24, 32768")
        for tb in range(TB):
            for f in range(NF):
                a(f"buffer_load_dwordx2 {vr(T+(tb*NF+f)*2,2)}, v9, s[28:31], s{24+tb} offen offset:{f*32}")
        a("s_waitcnt vmcnt(0)")
        for i in range(TB*NF*2):
            a(f"v_lshlrev_b32 v{ACC+2*i}, 16, v{T+i}\nv_and_b32 v{ACC+2*i+1}, 0xffff0000, v{T+i}")
    if kind=='ffn2':
        srd(a,28,4,WS_H,4*MB); srd(a,32,40,0,D*2); srd(a,36,42,0,S*D*2)
        a(f"s_lshl_b32 s24, s27, 15\ns_lshl_b32 s25, s10, 11\ns_add_u32 s24, s24, s25\ns_add_u32 s25, s24, 32768\nv_lshlrev_b32 v9, 4, v0\ns_lshl_b32 s26, s10, 7\nv_lshlrev_b32 v10, 3, v2")
        for tb in range(TB):
            for fp in range(NF//2):
                a(f"buffer_load_dwordx4 {vr(T+(tb*NF+2*fp)*2,4)}, v9, s[28:31], s{24+tb} offen offset:{fp*1024}")
        B=T+TB*NF*2
        for f in range(NF): a(f"buffer_load_dwordx2 {vr(B+2*f,2)}, v10, s[32:35], s26 offen offset:{f*32}")
        a("s_waitcnt vmcnt(0)")
        B2=B+2*NF
        for i in range(NF*2): a(f"v_lshlrev_b32 v{B2+2*i}, 16, v{B+i}\nv_and_b32 v{B2+2*i+1}, 0xffff0000, v{B+i}")
        for i in range(TB*NF*2):
            a(f"v_lshlrev_b32 v{ACC+2*i}, 16, v{T+i}\nv_and_b32 v{ACC+2*i+1}, 0xffff0000, v{T+i}")
        for i in range(NACC): a(f"v_add_f32 v{ACC+i}, v{ACC+i}, v{B2+i%(NF*4)}")
    if kind=='ffn1':
        for i in range(NACC): a(f"v_mov_b32 v{ACC+i}, 0")
    stamp(a,1)
    a(f"s_mov_b32 s22, 0\ns_mov_b32 s23, {nst}\ns_barrier")
    stamp(a,2)
    a.ext(reads(F0,0))
    a(f".p2align 5\n{name}_loop:")
    a(f"s_add_u32 s22, s22, {STG}\ns_cmp_eq_u32 s22, {lds}\ns_cselect_b32 s22, 0, s22\ns_sub_u32 s23, s23, 1\ns_waitcnt lgkmcnt(0)")
    a.ext(interleave(mfmas(F0),reads(F1,1),per=1))
    a("v_add_u32 v6, s22, v3\nv_add_u32 v7, s22, v4\ns_cmp_lg_u32 s23, 0\ns_waitcnt lgkmcnt(0)\ns_barrier")
    a.ext(interleave(mfmas(F1),reads(F0,0),per=1))
    a(f"s_cbranch_scc1 {name}_loop")
    stamp(a,3)
    a("s_waitcnt lgkmcnt(0)\ns_nop 7")
    P=F0
    def pack(dst,s0,s1):
        return [f"v_cvt_pk_bf16_f32 v{dst}, v{s0}, v{s0+1}",f"v_cvt_pk_bf16_f32 v{dst+1}, v{s0+2}, v{s0+3}",
                f"v_cvt_pk_bf16_f32 v{dst+2}, v{s1}, v{s1+1}",f"v_cvt_pk_bf16_f32 v{dst+3}, v{s1+2}, v{s1+3}"]
    if kind=='qkv':
        srd(a,28,4,WS_Q,4*MB); srd(a,32,4,WS_KV,8*MB)
        a(f"""s_lshl_b32 s24, s10, 1
s_add_u32 s24, s24, s3
s_lshl_b32 s24, s24, 6
s_lshr_b32 s25, s27, 1
s_add_u32 s24, s24, s25
s_lshl_b32 s25, s24, 12
s_lshl_b32 s24, s24, 11
s_add_u32 s26, s25, 4096
v_lshlrev_b32 v9, 9, v2
v_lshl_add_u32 v10, v1, 4, v9
v_lshrrev_b32 v11, 3, v1
v_lshlrev_b32 v11, 8, v11
v_and_b32 v12, 7, v1
v_lshl_add_u32 v11, v12, 4, v11
v_add_u32 v11, v11, v9
s_mov_b32 s44, {f2u(DH**-0.5*1.4426950408889634)}
s_mov_b32 s45, s44""")
        for tb in range(TB):
            a.ext(pack(P+tb*4,acc(tb,2),acc(tb,3)))
            a(f"buffer_store_dwordx4 {vr(P+tb*4,4)}, v11, s[32:35], s{25+(tb>>1)} offen offset:{(tb&1)*128}")
        for kb in range(2):
            for e in range(2):
                d=P+16+(kb*2+e)*4
                a.ext(pack(d,acc(2*kb,4+e),acc(2*kb+1,4+e)))
                a(f"buffer_store_dwordx4 {vr(d,4)}, v10, s[32:35], s{25+kb} offen offset:{2048+e*256}")
        for tb in range(TB):
            for i in range(4): a(f"v_pk_mul_f32 {vr(acc(tb,0)+2*i,2)}, {vr(acc(tb,0)+2*i,2)}, s[44:45]")
            d=P+32+tb*4
            a.ext(pack(d,acc(tb,0),acc(tb,1)))
            a(f"buffer_store_dwordx4 {vr(d,4)}, v10, s[28:31], s24 offen offset:{(tb>>1)*2048+(tb&1)*256}")
    if kind=='wo':
        srd(a,28,4,WS_H,4*MB); srd(a,32,4,WS_ST,16*S*8)
        a(f"s_lshl_b32 s24, s27, 15\ns_lshl_b32 s25, s10, 11\ns_add_u32 s24, s24, s25\ns_add_u32 s25, s24, 32768\nv_lshlrev_b32 v9, 4, v0")
        for tb in range(TB):
            for fp in range(2):
                d=P+(tb*2+fp)*4
                a.ext(pack(d,acc(tb,2*fp),acc(tb,2*fp+1)))
                a(f"buffer_store_dwordx4 {vr(d,4)}, v9, s[28:31], s{24+tb} offen offset:{fp*1024}")
        Q=P+16
        for tb in range(TB):
            a(f"v_mov_b32 v{Q+4*tb}, 0\nv_mov_b32 v{Q+4*tb+1}, 0")
            for i in range(8):
                a(f"""v_lshlrev_b32 v12, 16, v{P+tb*8+i}
v_and_b32 v13, 0xffff0000, v{P+tb*8+i}
v_add_f32 v{Q+4*tb}, v{Q+4*tb}, v12
v_fmac_f32 v{Q+4*tb+1}, v12, v12
v_add_f32 v{Q+4*tb}, v{Q+4*tb}, v13
v_fmac_f32 v{Q+4*tb+1}, v13, v13""")
        for sw in ('16','32'):
            for tb in range(TB):
                t=Q+4*tb; a(f"v_mov_b32 v{t+2}, v{t}\nv_mov_b32 v{t+3}, v{t+1}")
            a("s_nop 1")
            for tb in range(TB):
                t=Q+4*tb; a(f"v_permlane{sw}_swap_b32 v{t}, v{t+2}\nv_permlane{sw}_swap_b32 v{t+1}, v{t+3}")
            a("s_nop 1")
            for tb in range(TB):
                t=Q+4*tb; a(f"v_pk_add_f32 {vr(t,2)}, {vr(t,2)}, {vr(t+2,2)}")
        a(f"""v_cmp_eq_u32 vcc, 1, v2
s_lshl_b32 s24, s27, 7
s_lshl_b32 s25, s10, 14
s_add_u32 s24, s24, s25
v_lshlrev_b32 v9, 3, v0
v_cndmask_b32 v{Q}, v{Q}, v{Q+4}, vcc
v_cndmask_b32 v{Q+1}, v{Q+1}, v{Q+5}, vcc
s_mov_b32 exec_hi, 0
buffer_store_dwordx2 {vr(Q,2)}, v9, s[32:35], s24 offen""")
    if kind=='ffn2':
        a(f"""s_lshl_b32 s24, s27, 15
s_lshl_b32 s25, s10, 7
s_add_u32 s24, s24, s25
s_add_u32 s25, s24, 32768
v_lshlrev_b32 v9, 11, v1
v_and_b32 v10, 1, v2
v_lshl_add_u32 v9, v10, 5, v9
v_lshrrev_b32 v10, 1, v2
v_lshl_add_u32 v9, v10, 4, v9""")
        for tb in range(TB):
            for fp in range(2):
                a.ext(pack(P+(tb*2+fp)*4,acc(tb,2*fp),acc(tb,2*fp+1)))
        a("s_nop 1")
        for tb in range(TB):
            for fp in range(2):
                d=P+(tb*2+fp)*4
                a(f"v_permlane16_swap_b32 v{d}, v{d+2}\nv_permlane16_swap_b32 v{d+1}, v{d+3}")
                a(f"buffer_store_dwordx4 {vr(d,4)}, v9, s[36:39], s{24+tb} offen offset:{fp*64}")
    if kind=='ffn1':
        srd(a,28,4,WS_G,14*MB)
        c0=-2*1.4426950408889634*0.7978845608028654; c1=c0*0.044715
        RS=P+24; BB=RS+8; CS=BB+28; assert CS+28<=VTOP
        a(f"""s_lshl_b32 s24, s11, 9
s_add_u32 s24, s24, {PAR}
v_lshl_add_u32 v9, v1, 3, s24
s_mul_i32 s24, s3, 448
s_add_u32 s24, s24, {PAR}
v_lshl_add_u32 v10, v2, 4, s24""")
        for tb in range(TB): a(f"ds_read_b64 {vr(RS+2*tb,2)}, v9 offset:{tb*128}")
        for f in range(NF): a(f"ds_read_b128 {vr(BB+4*f,4)}, v10 offset:{1024+f*64}\nds_read_b128 {vr(CS+4*f,4)}, v10 offset:{2048+f*64}")
        a(f"""s_mov_b32 s44, {f2u(c1)}
s_mov_b32 s45, s44
v_mov_b32 v12, {f2u(c0)}
v_mov_b32 v13, v12
s_mul_i32 s24, s27, {112*1024}
s_mul_i32 s25, s10, {7*1024}
s_add_u32 s24, s24, s25
s_mul_i32 s25, s3, {4*1024}
s_add_u32 s48, s24, s25
s_lshl_b32 s25, s3, 9
s_add_u32 s52, s24, s25
s_add_u32 s52, s52, {3*1024}
s_add_u32 s54, s52, {2*112*1024}
v_lshlrev_b32 v9, 4, v0
v_and_b32 v10, 1, v2
v_mul_u32_u24 v10, {112*1024}, v10
v_lshl_add_u32 v10, v1, 4, v10
v_lshrrev_b32 v11, 1, v2
v_lshl_add_u32 v10, v11, 8, v10""")
        for tb in range(1,TB): a(f"s_add_u32 s{48+tb}, s48, {tb*112*1024}")
        a("s_waitcnt lgkmcnt(0)")
        def gelu(tb,f,t):
            r=[]; x=acc(tb,f); rs=vr(RS+2*tb,2)
            for e in (0,2): r.append(f"v_pk_fma_f32 {vr(t+e,2)}, {vr(CS+4*f+e,2)}, {rs}, {vr(BB+4*f+e,2)} op_sel:[0,1,0] op_sel_hi:[1,1,1]")
            for e in (0,2): r.append(f"v_pk_fma_f32 {vr(x+e,2)}, {vr(x+e,2)}, {rs}, {vr(t+e,2)} op_sel_hi:[1,0,1]")
            for e in (0,2): r.append(f"v_pk_mul_f32 {vr(t+e,2)}, {vr(x+e,2)}, {vr(x+e,2)}")
            for e in (0,2): r.append(f"v_pk_fma_f32 {vr(t+e,2)}, {vr(t+e,2)}, s[44:45], v[12:13]")
            for e in (0,2): r.append(f"v_pk_mul_f32 {vr(t+e,2)}, {vr(t+e,2)}, {vr(x+e,2)}")
            for e in range(4): r.append(f"v_exp_f32 v{t+e}, v{t+e}")
            for e in (0,2): r.append(f"v_pk_add_f32 {vr(t+e,2)}, {vr(t+e,2)}, 1.0 op_sel_hi:[1,0]")
            for e in range(4): r.append(f"v_rcp_f32 v{t+e}, v{t+e}")
            for e in (0,2): r.append(f"v_pk_mul_f32 {vr(x+e,2)}, {vr(x+e,2)}, {vr(t+e,2)}")
            return r
        for wn in range(2):
            if wn==0: a(f"s_cmp_eq_u32 s3, 1\ns_cbranch_scc1 {name}_ep1")
            else: a(f"{name}_ep1:")
            cnt=0
            fo=6 if wn==0 else 0
            for tb in (0,2):
                for x,y in zip(gelu(tb,fo,P),gelu(tb+1,fo,P+4)): a(x); a(y)
                d=P+8+(cnt%4)*4; cnt+=1
                a.ext(pack(d,acc(tb,fo),acc(tb+1,fo)))
                a(f"s_nop 1\nv_permlane16_swap_b32 v{d}, v{d+2}\nv_permlane16_swap_b32 v{d+1}, v{d+3}\nbuffer_store_dwordx4 {vr(d,4)}, v10, s[28:31], s{52+tb} offen")
            for tb in range(TB):
                for fp in range(3):
                    for x,y in zip(gelu(tb,wn+2*fp,P),gelu(tb,wn+2*fp+1,P+4)): a(x); a(y)
                    d=P+8+(cnt%4)*4; cnt+=1
                    a.ext(pack(d,acc(tb,wn+2*fp),acc(tb,wn+2*fp+1)))
                    a(f"buffer_store_dwordx4 {vr(d,4)}, v9, s[28:31], s{48+tb} offen offset:{fp*1024}")
            if wn==0:
                stamp(a,4); stamp_out(a,KID,5); a("s_endpgm")
        lds+=3072
    stamp(a,4); stamp_out(a,KID,5)
    a(f"{name}_end:\ns_endpgm")
    assert VTOP<=256, VTOP
    if SC: a.l=[x+' '+SC if x.strip().startswith('buffer_store') else x for x in a.l]
    return dict(name=name,text=khead(name)+a.txt(),desc=kdesc(name,VTOP),grid=256,block=512,lds=lds)
```

```python
from common import *
from gemm import f2u

def xreduce(a, regs, tmp, op="v_add_f32", sws=('16','32')):
    for sw in sws:
        for r,t in zip(regs,tmp): a(f"v_mov_b32 v{t}, v{r}")
        a("s_nop 1")
        for r,t in zip(regs,tmp): a(f"v_permlane{sw}_swap_b32 v{r}, v{t}")
        a("s_nop 1")
        for r,t in zip(regs,tmp): a(f"{op} v{r}, v{r}, v{t}")

def ln1(name):
    a=A()
    X=16; U=32; R=64
    a(f"""s_cmp_ge_u32 s2, 256
s_cbranch_scc1 {name}_end
s_load_dwordx4 s[4:7], s[0:1], {KA_X}
s_load_dwordx2 s[8:9], s[0:1], {KA_WS}""")
    stamp(a,-1); stamp(a,0)
    a(f"""v_lshrrev_b32 v1, 6, v0
v_and_b32 v0, 63, v0
v_and_b32 v2, 7, v0
v_readfirstlane_b32 s10, v1
v_lshrrev_b32 v3, 3, v0
v_lshlrev_b32 v4, 11, v2
v_lshl_add_u32 v4, v3, 4, v4
s_lshl_b32 s20, s2, 14
s_lshl_b32 s21, s10, 9
s_add_u32 s21, s21, s20
s_movk_i32 s30, 6144
s_waitcnt lgkmcnt(0)""")
    srd(a,12,4,0,S*D*2)
    for i in range(4): a(f"buffer_load_dwordx4 {vr(X+4*i,4)}, v4, s[12:15], s21 offen offset:{i*128}")
    wlane(a,10,'s30','nat',11)
    srd(a,24,6,0,D*3*D*2)
    a(f"""s_lshr_b32 s31, s2, 3
s_and_b32 s32, s2, 7
s_lshl_b32 s32, s32, 2
s_add_u32 s32, s32, s10
s_mul_i32 s33, s31, {32*6144}
s_lshl_b32 s34, s32, 6
s_add_u32 s33, s33, s34
s_mul_i32 s35, s10, 6144
s_add_u32 s35, s35, 1024""")
    for pt in range(3):
        for b in range(2):
            a(f"s_add_u32 m0, s35, {pt*2048+b*1024}\ns_add_u32 s34, s33, {pt*2048+b*4*6144}\nbuffer_load_dwordx4 v10, s[24:27], s34 offen lds")
    trlane(a,14,'s35',11)
    srd(a,16,8,WS_XN,4*MB); srd(a,24,8,WS_WQ,6*MB)
    a(f"""s_lshr_b32 s33, s32, 1
s_lshl_b32 s33, s33, 5
s_add_u32 s33, s33, s31
s_mul_i32 s33, s33, {12*1024}
s_and_b32 s34, s32, 1
s_mul_i32 s34, s34, 6144
s_add_u32 s33, s33, s34
s_add_u32 s34, s33, 4096
s_lshr_b32 s22, s2, 1
s_lshl_b32 s22, s22, 15
s_and_b32 s23, s2, 1
s_lshl_b32 s23, s23, 7
s_add_u32 s22, s22, s23
s_lshl_b32 s23, s10, 13
s_add_u32 s22, s22, s23
s_add_u32 s23, s22, 4096
v_lshlrev_b32 v5, 4, v2
s_lshl_b32 s36, s10, 2
v_add_u32 v6, s36, v5
v_lshl_add_u32 v7, v3, 8, v5
v_mov_b32 v8, 0
v_mov_b32 v9, 0""")
    for i in range(4):
        a(f"s_waitcnt vmcnt({9-i})")
        for j in range(4):
            r=4*i+j
            a(f"v_lshlrev_b32 v{U+2*r}, 16, v{X+r}\nv_and_b32 v{U+2*r+1}, 0xffff0000, v{X+r}\nv_pk_add_f32 v[8:9], v[8:9], {vr(U+2*r,2)}")
    def wgreduce(off):
        a("v_add_f32 v8, v8, v9\ns_nop 1\nv_add_f32_dpp v8, v8, v8 row_ror:8 row_mask:0xf bank_mask:0xf")
        xreduce(a,[8],[9])
        a(f"""ds_write_b32 v6, v8 offset:{off}
s_waitcnt lgkmcnt(0)
s_barrier
ds_read_b128 v[{R}:{R+3}], v5 offset:{off}
s_waitcnt lgkmcnt(0)
v_add_f32 v12, v{R}, v{R+1}
v_add_f32 v13, v{R+2}, v{R+3}
v_add_f32 v12, v12, v13""")
    stamp(a,1)
    wgreduce(0)
    stamp(a,2)
    a(f"v_mul_f32 v10, {f2u(-1.0/D)}, v12\nv_mov_b32 v8, 0\nv_mov_b32 v9, 0")
    for r in range(16): a(f"v_pk_add_f32 {vr(U+2*r,2)}, {vr(U+2*r,2)}, v[10:11] op_sel_hi:[1,0]")
    for r in range(16): a(f"v_pk_fma_f32 v[8:9], {vr(U+2*r,2)}, {vr(U+2*r,2)}, v[8:9]")
    wgreduce(256)
    a(f"v_mov_b32 v13, {f2u(1e-5)}\nv_fmac_f32 v13, {f2u(1.0/D)}, v12\nv_rsq_f32 v10, v13\ns_nop 0")
    for i in range(4):
        for j in range(4):
            r=4*i+j
            a(f"v_pk_mul_f32 {vr(U+2*r,2)}, {vr(U+2*r,2)}, v[10:11] op_sel_hi:[1,0]")
        for j in range(4):
            r=4*i+j
            a(f"v_cvt_pk_bf16_f32 v{X+r}, v{U+2*r}, v{U+2*r+1}")
        a(f"buffer_store_dwordx4 {vr(X+4*i,4)}, v7, s[16:19], s{22+(i>>1)} offen offset:{(i&1)*2048}")
    stamp(a,3)
    a("v_lshlrev_b32 v7, 4, v0\ns_waitcnt vmcnt(4)")
    for pt in range(3): a.ext(trreads(R+8*pt,14,pt*2048))
    for f in range(6):
        if f%2==0: a(f"s_waitcnt lgkmcnt({0 if STAMP else 8-4*(f//2)})")
        a(f"buffer_store_dwordx4 {vr(R+4*f,4)}, v7, s[24:27], s{33+f//4} offen offset:{(f%4)*1024}")
    stamp(a,4); stamp_out(a,0,5,8,'s10')
    a(f"{name}_end:\ns_endpgm")
    if SC: a.l=[x+' '+SC if x.strip().startswith('buffer_store') else x for x in a.l]
    return dict(name=name,text=khead(name)+a.txt(),desc=kdesc(name,88,96),grid=256,block=256,lds=1024+4*6144)

def attn(name):
    a=A()
    G=256
    a(f"""s_cmp_ge_u32 s2, {G}
s_cbranch_scc1 {name}_end
s_load_dwordx2 s[4:5], s[0:1], {KA_WS}
s_load_dwordx2 s[6:7], s[0:1], {KA_W1}
s_load_dwordx2 s[46:47], s[0:1], {KA_WO}
s_load_dwordx2 s[48:49], s[0:1], {KA_W2}""")
    SA=16; SB=32; O=48; NM=64; Q=80; Kf=88; Vf=96; P=104; L=112; ON=116; WT=120; CSA=128; ON1=136; VT=140; STG=65536; CSL=STG+16384
    a(f"""{name}_att:
v_lshrrev_b32 v1, 6, v0
v_and_b32 v0, 63, v0
s_and_b32 s24, s2, 7
v_readfirstlane_b32 s8, v1
s_lshr_b32 s25, s2, 3
s_lshl_b32 s9, s24, 2
s_lshr_b32 s26, s25, 3
s_add_u32 s9, s9, s26
s_and_b32 s25, s25, 7
s_lshl_b32 s10, s25, 3
s_add_u32 s10, s10, s8
v_lshlrev_b32 v2, 4, v0
s_lshl_b32 s24, s9, 18
s_lshl_b32 s44, s8, 11
v_add_u32 v3, s44, v2
s_mov_b32 s40, 0
s_waitcnt lgkmcnt(0)
s_add_u32 s12, s4, s24
s_addc_u32 s13, s5, 0
s_add_u32 s12, s12, {hex(WS_KV)}
s_addc_u32 s13, s13, 0
s_mov_b32 s14, 0x40000
s_mov_b32 s15, 0x20000""")
    stamp(a,-1); stamp(a,0)
    srd(a,16,4,WS_Q,4*MB)
    a(f"""s_lshl_b32 s24, s9, 6
s_add_u32 s24, s24, s10
s_lshl_b32 s24, s24, 11
buffer_load_dwordx4 {vr(Q,4)}, v2, s[16:19], s24 offen
buffer_load_dwordx4 {vr(Q+4,4)}, v2, s[16:19], s24 offen offset:1024""")
    srd(a,16,4,WS_O,4*MB)
    a(f"""v_lshrrev_b32 v4, 4, v0
v_lshrrev_b32 v5, 2, v0
v_xor_b32 v4, v4, v5
v_and_b32 v4, 1, v4
v_cmp_eq_u32 vcc, 0, v4
v_mov_b32 v5, 0x3f803f80
s_nop 1
v_cndmask_b32 v{ON}, 0, v5, vcc
v_cndmask_b32 v{ON+1}, 0, v5, vcc
v_cndmask_b32 v{ON+2}, 0, v5, vcc
v_cndmask_b32 v{ON+3}, 0, v5, vcc""")
    def dma():
        return ["s_add_u32 m0, s22, s44","s_add_u32 s22, s22, 0x4000",
                "buffer_load_dwordx4 v3, s[12:15], s20 offen lds","buffer_load_dwordx4 v3, s[12:15], s20 offen offset:1024 lds",
                "s_add_u32 s20, s20, 0x4000","s_and_b32 s22, s22, 0xffff"]
    a(f"{name}_restart:\ns_mov_b32 s20, 0\ns_mov_b32 s22, 0")
    for i in range(3): a.ext(dma())
    a(f"""s_cmp_lg_u32 s40, 0
s_cbranch_scc1 {name}_nort
s_cmp_lt_u32 s2, 112
s_cbranch_scc0 {name}_rt2""")
    srd(a,28,6,0,D*F*2); srd(a,32,4,WS_W1,D*F*2)
    a(f"""s_movk_i32 s56, {F*2}
s_mul_i32 s60, s2, 4682
s_lshr_b32 s60, s60, 16
s_mul_i32 s25, s60, 14
s_sub_u32 s25, s2, s25
s_lshl_b32 s61, s25, 3
s_add_u32 s61, s61, s8
s_mul_i32 s50, s60, {128*F*2}
s_lshl_b32 s24, s61, 6
s_add_u32 s50, s50, s24
s_mov_b32 s51, {32*F*2}
s_mov_b32 s52, {16*F*2}
s_mul_i32 s24, s61, 9363
s_lshr_b32 s24, s24, 16
s_mul_i32 s25, s24, 7
s_sub_u32 s25, s61, s25
s_lshl_b32 s24, s24, 5
s_lshl_b32 s26, s60, 2
s_add_u32 s24, s24, s26
s_mul_i32 s24, s24, 7
s_add_u32 s24, s24, s25
s_lshl_b32 s53, s24, 11
s_movk_i32 s54, {7*2048}
s_movk_i32 s55, {7*2048}""")
    wlane(a,10,'s56','id',11)
    a(f"""s_branch {name}_rt9
{name}_rt2:
s_movk_i32 s56, 2048
s_movk_i32 s51, 64
s_movk_i32 s54, 2048
s_cmp_lt_u32 s2, 224
s_cbranch_scc0 {name}_rt3""")
    srd(a,28,48,0,D*F*2); srd(a,32,4,WS_W2,D*F*2)
    a(f"""s_sub_u32 s26, s2, 112
s_mul_i32 s53, s8, {2*112*4096}
s_mov_b32 s55, {112*4096-2048}
s_mul_i32 s24, s26, 9363
s_lshr_b32 s24, s24, 16
s_mul_i32 s25, s24, 7
s_sub_u32 s25, s26, s25
s_cmp_eq_u32 s25, 3
s_cbranch_scc1 {name}_rt2n
s_mov_b32 s52, {16*2048}""")
    wlane(a,10,'s56','id',11)
    a(f"s_branch {name}_rt8\n{name}_rt2n:\ns_movk_i32 s52, {4*2048}")
    wlane(a,10,'s56','nat',11)
    a(f"s_branch {name}_rt8\n{name}_rt3:")
    srd(a,28,46,0,D*D*2); srd(a,32,4,WS_WO,D*D*2)
    a(f"s_sub_u32 s26, s2, 224\ns_mul_i32 s53, s8, {2*32*4096}\ns_mov_b32 s55, {32*4096-2048}\ns_movk_i32 s52, {8*2048}")
    wlane(a,10,'s56','att',11)
    a(f"""{name}_rt8:
s_lshl_b32 s50, s26, 16
s_lshl_b32 s24, s8, 8
s_add_u32 s50, s50, s24
s_lshl_b32 s24, s26, 12
s_add_u32 s53, s53, s24
{name}_rt9:
s_add_u32 s57, s44, {STG}""")
    def wdma():
        return ["s_mov_b32 m0, s57","s_add_u32 s24, s50, s52","buffer_load_dwordx4 v10, s[28:31], s50 offen lds",
                "s_add_u32 m0, s57, 1024","s_add_u32 s50, s50, s51","buffer_load_dwordx4 v10, s[28:31], s24 offen lds"]
    trlane(a,12,'s57',11)
    for i in range(8): a(f"v_mov_b32 v{CSA+i}, 0")
    for i in range(4): a(f"v_mov_b32 v{ON1+i}, 0x3f803f80")
    a(f"s_mov_b32 s58, 0x1249\ns_mov_b32 s59, 0x6db6\ns_branch {name}_rtd\n{name}_nort:\ns_mov_b32 s58, 0\ns_mov_b32 s59, 0\n{name}_rtd:\ns_waitcnt vmcnt(4)")
    for i in range(16): a(f"v_mov_b32 v{O+i}, 0")
    for i in range(4): a(f"v_mov_b32 v{L+i}, 0\nv_mov_b32 v{P+4+i}, 0\nv_mov_b32 v{Vf+4+i}, 0")
    a(f"""v_mov_b32 v6, v2
v_add_u32 v7, 0x4000, v2
s_mov_b32 s23, 16
s_mov_b32 s21, 0x4000
s_barrier
ds_read_b128 {vr(Kf,4)}, v6
ds_read_b128 {vr(Kf+4,4)}, v6 offset:1024
s_cmp_lg_u32 s40, 0
s_cbranch_scc1 {name}_havemax
s_waitcnt lgkmcnt(0)
{mf32(SA,Kf,Q,'0')}
{mf32(SA,Kf+4,Q+4)}
s_nop 15
v_max3_f32 v8, v{SA}, v{SA+1}, v{SA+2}""")
    for i in range(3,15,2): a(f"v_max3_f32 v8, v{SA+i}, v{SA+i+1}, v8")
    a(f"v_max_f32 v8, v{SA+15}, v8")
    xreduce(a,[8],[9],"v_max_f32",('32',))
    a(f"{name}_havemax:")
    stamp(a,1); stamp(a,2)
    for i in range(16): a(f"v_sub_f32 v{NM+i}, 0, v8")
    a(f"""s_waitcnt lgkmcnt(0)
s_nop 0
{mf32(SA,Kf,Q,vr(NM,16))}
{mf32(SA,Kf+4,Q+4)}
ds_read_b128 {vr(Kf,4)}, v6 offset:4096
ds_read_b128 {vr(Kf+4,4)}, v6 offset:{4096+1024}
ds_read_b128 {vr(Vf,4)}, v6 offset:2048
s_waitcnt lgkmcnt(0)
s_nop 7
.p2align 5
{name}_loop:""")
    def rd(dst,t,off):
        return f"ds_read_b128 {vr(dst,4)}, v{6 if t<4 else 7} offset:{(t%4)*4096+off}"
    ex=lambda s,i: f"v_exp_f32 v{s+i}, v{s+i}"
    cv=lambda d,s: f"v_cvt_pk_bf16_f32 v{d}, v{s}, v{s+1}"
    for t in range(4):
        C,N=(SA,SB) if t%2==0 else (SB,SA)
        if t==2:
            a(f"s_bitcmp1_b32 s59, 0\ns_waitcnt vmcnt(6)\ns_cbranch_scc1 {name}_w6\ns_waitcnt vmcnt(2)\n{name}_w6:\ns_lshr_b32 s59, s59, 1\ns_barrier"); a.ext(dma())
            a(f"s_bitcmp1_b32 s58, 0\ns_cbranch_scc1 {name}_rtb\n{name}_rtr:\ns_lshr_b32 s58, s58, 1")
        a("s_waitcnt lgkmcnt(3)")
        a(mf32(N,Kf,Q,vr(NM,16))); a(rd(Kf,t+2,0))
        for i in range(0,4): a(ex(C,i))
        a("s_waitcnt lgkmcnt(3)")
        a(mf32(O,Vf+4,P+4)); a(rd(Vf+4,t,3072))
        for i in range(4,6): a(ex(C,i))
        a(mf16(L,ON,P+4))
        for i in range(6,8): a(ex(C,i))
        a(cv(P,C)); a(cv(P+1,C+2))
        a("s_waitcnt lgkmcnt(3)")
        a(mf32(N,Kf+4,Q+4)); a(rd(Kf+4,t+2,1024))
        a(cv(P+2,C+4)); a(cv(P+3,C+6))
        for i in range(8,11): a(ex(C,i))
        a("s_waitcnt lgkmcnt(3)")
        a(mf32(O,Vf,P)); a(rd(Vf,t+1,2048))
        for i in range(11,14): a(ex(C,i))
        a(mf16(L,ON,P))
        for i in range(14,16): a(ex(C,i))
        if t==3: a("s_add_u32 s21, s21, 0x4000\ns_and_b32 s21, s21, 0xffff\ns_sub_u32 s23, s23, 1\ns_cmp_lg_u32 s23, 0\nv_mov_b32 v6, v7")
        a(cv(P+4,C+8)); a(cv(P+5,C+10)); a(cv(P+6,C+12)); a(cv(P+7,C+14))
        if t==3: a("v_add_u32 v7, s21, v2")
    a(f"""s_cbranch_scc1 {name}_loop
s_waitcnt lgkmcnt(0)
{mf32(O,Vf+4,P+4)}
{mf16(L,ON,P+4)}
s_waitcnt vmcnt(0)
s_nop 15
s_cmp_lg_u32 s40, 0
s_cbranch_scc1 {name}_fin
v_mov_b32 v8, 0""")
    stamp(a,3)
    for i in range(16): a(f"v_fma_f32 v8, v{O+i}, 0, v8")
    a(f"""v_add_f32 v8, v8, v{L}
v_cmp_ngt_f32 vcc, {f2u(2.0**60)}, v8
s_barrier
s_cmp_lg_u64 vcc, 0
s_cselect_b32 s24, 1, 0
v_mov_b32 v9, s24
s_lshl_b32 s25, s8, 2
v_mov_b32 v10, s25
ds_write_b32 v10, v9
s_waitcnt lgkmcnt(0)
s_barrier
v_and_b32 v10, 7, v0
v_lshlrev_b32 v10, 2, v10
ds_read_b32 v9, v10
s_waitcnt lgkmcnt(0)
v_cmp_ne_u32 vcc, 0, v9
s_nop 1
s_cmp_eq_u64 vcc, 0
s_cbranch_scc1 {name}_fin
s_barrier
s_mov_b32 s40, 1
s_mov_b32 s20, 0
v_mov_b32 v8, 0xff800000
{name}_mx:
buffer_load_dwordx4 {vr(Kf,4)}, v2, s[12:15], s20 offen
buffer_load_dwordx4 {vr(Kf+4,4)}, v2, s[12:15], s20 offen offset:1024
s_add_u32 s20, s20, 0x1000
s_waitcnt vmcnt(0)
{mf32(SA,Kf,Q,'0')}
{mf32(SA,Kf+4,Q+4)}
s_nop 15""")
    for i in range(0,16,2): a(f"v_max3_f32 v8, v{SA+i}, v{SA+i+1}, v8")
    a(f"s_cmp_lt_u32 s20, 0x40000\ns_cbranch_scc1 {name}_mx")
    xreduce(a,[8],[9],"v_max_f32",('32',))
    a(f"s_branch {name}_restart\n{name}_rtb:")
    a.ext(trreads(WT,12))
    a(f"""s_cmp_eq_u32 s58, 0x1249
s_cselect_b32 s25, 0x7f000000, s53
s_cbranch_scc1 {name}_rtf
s_waitcnt lgkmcnt(0)
{mf16(CSA,WT,ON1)}
{mf16(CSA+4,WT+4,ON1)}
s_add_u32 s53, s53, s54
s_mov_b32 s24, s54
s_mov_b32 s54, s55
s_mov_b32 s55, s24
{name}_rtf:
s_waitcnt lgkmcnt(0)
buffer_store_dwordx4 {vr(WT,4)}, v2, s[32:35], s25 offen
buffer_store_dwordx4 {vr(WT+4,4)}, v2, s[32:35], s25 offen offset:1024
s_cmp_eq_u32 s58, 1
s_cselect_b32 s50, 0x7f000000, s50""")
    a.ext(wdma())
    a(f"""s_branch {name}_rtr
{name}_fin:
s_cmp_lt_u32 s2, 112
s_cbranch_scc0 {name}_fin2""")
    srd(a,28,4,WS_CS,8*F*4)
    a(f"""s_mul_i32 s24, s60, {F*4}
s_lshl_b32 s25, s61, 7
s_add_u32 s24, s24, s25
v_and_b32 v10, 1, v0
v_cmp_eq_u32 vcc, 1, v10
v_lshlrev_b32 v10, 6, v10
v_lshrrev_b32 v11, 4, v0
v_lshl_add_u32 v10, v11, 4, v10""")
    for i in range(4): a(f"v_cndmask_b32 v{CSA+i}, v{CSA+i}, v{CSA+4+i}, vcc")
    a(f"""s_mov_b32 exec_lo, 0x30003
s_mov_b32 exec_hi, 0x30003
buffer_store_dwordx4 {vr(CSA,4)}, v10, s[28:31], s24 offen
s_mov_b64 exec, -1
{name}_fin2:
v_rcp_f32 v8, v{L}
s_lshl_b32 s24, s10, 16
s_lshl_b32 s25, s9, 10
s_add_u32 s24, s24, s25
v_bfe_u32 v9, v0, 4, 1
v_lshlrev_b32 v9, 15, v9
v_and_b32 v10, 15, v0
v_lshl_add_u32 v9, v10, 4, v9
v_lshrrev_b32 v10, 5, v0
v_lshl_add_u32 v9, v10, 8, v9""")
    for i in range(8): a(f"v_pk_mul_f32 {vr(O+2*i,2)}, {vr(O+2*i,2)}, v[8:9] op_sel_hi:[1,0]")
    for i in range(8): a(cv(P+i,O+2*i))
    a(f"""buffer_store_dwordx4 {vr(P,4)}, v9, s[16:19], s24 offen
buffer_store_dwordx4 {vr(P+4,4)}, v9, s[16:19], s24 offen offset:512""")
    stamp(a,4); stamp_out(a,2,5)
    a(f"{name}_end:\ns_endpgm")
    if SC: a.l=[x+' '+SC if x.strip().startswith('buffer_store') else x for x in a.l]
    return dict(name=name,text=khead(name)+a.txt(),desc=kdesc(name,VT,96),grid=G,block=512,lds=CSL)
```

```python
S=2048; D=1024; F=3584; H=32; DH=32
MB=1<<20
WS_XN=0*MB; WS_Q=4*MB; WS_KV=8*MB; WS_O=16*MB; WS_H=20*MB; WS_G=24*MB
WS_ST=40*MB
WS_WQ=48*MB; WS_WO=54*MB; WS_W1=56*MB; WS_W2=64*MB
WS_CS=41*MB
KA_X,KA_WQKV,KA_WO,KA_BX,KA_W1,KA_B1,KA_W2,KA_B2,KA_OUT,KA_DBG,KA_WS=[8*i for i in range(11)]

class A:
    def __init__(s): s.l=[]
    def __call__(s,t):
        for x in t.strip('\n').split('\n'):
            x=x.strip()
            if not x: continue
            s.l.append(x if x.endswith(':') else '  '+x)
    def ext(s,ls):
        for x in ls: s(x)
    def txt(s): return '\n'.join(s.l)+'\n'

def vr(b,n=1): return f"v{b}" if n==1 else f"v[{b}:{b+n-1}]"
def sr(b,n=1): return f"s{b}" if n==1 else f"s[{b}:{b+n-1}]"
def mf16(d,a,b,c=None):
    c=vr(d,4) if c is None else c
    return f"v_mfma_f32_16x16x32_bf16 {vr(d,4)}, {vr(a,4)}, {vr(b,4)}, {c}"
def mf32(d,a,b,c=None):
    c=vr(d,16) if c is None else c
    return f"v_mfma_f32_32x32x16_bf16 {vr(d,16)}, {vr(a,4)}, {vr(b,4)}, {c}"
def srd(a,dst,base,off,size):
    if off:
        a(f"s_add_u32 s{dst}, s{base}, {hex(off)}\ns_addc_u32 s{dst+1}, s{base+1}, 0")
    else:
        a(f"s_mov_b32 s{dst}, s{base}\ns_mov_b32 s{dst+1}, s{base+1}")
    a(f"s_mov_b32 s{dst+2}, {hex(size)}\ns_mov_b32 s{dst+3}, 0x20000")
def interleave(mains, fills, start=0, per=1):
    out=[]; j=0
    for i,m in enumerate(mains):
        out.append(m)
        if i>=start:
            out+=fills[j:j+per]; j+=per
    return out+fills[j:]
def khead(name):
    return f".globl {name}\n.p2align 8\n.type {name},@function\n{name}:\n"
def kdesc(name,vg,sg=96):
    acc=(vg+3)//4*4
    return f""".p2align 6
.amdhsa_kernel {name}
  .amdhsa_next_free_vgpr {vg}
  .amdhsa_next_free_sgpr {sg}
  .amdhsa_accum_offset {acc}
  .amdhsa_group_segment_fixed_size 0
  .amdhsa_kernarg_size 88
  .amdhsa_user_sgpr_count 2
  .amdhsa_user_sgpr_kernarg_segment_ptr 1
  .amdhsa_system_sgpr_workgroup_id_x 1
.end_amdhsa_kernel
"""
import os
STAMP=int(os.environ.get('STAMP','0'))
WS_TS=44*MB
def stamp(a,i):
    if STAMP: a(f"s_memtime s[{64+2*i}:{65+2*i}]" if i>=0 else "s_memrealtime s[80:81]")
def stamp_out(a,kid,n,wsreg=4,wave='s8'):
    if not STAMP: return
    a("s_waitcnt vmcnt(0)"); stamp(a,n); a("s_memrealtime s[82:83]\ns_waitcnt lgkmcnt(0)")
    a(f"s_mov_b64 exec, 1\ns_lshl_b32 s84, s2, 3\ns_add_u32 s84, s84, {wave}\ns_lshl_b32 s84, s84, 6\ns_add_u32 s84, s84, {WS_TS+kid*(1<<18)}\nv_mov_b32 v250, s84")
    for i in range(n+1): a(f"v_mov_b32 v251, s{64+2*i}\nglobal_store_dword v250, v251, s[{wsreg}:{wsreg+1}] offset:{4*i}")
    a(f"v_mov_b32 v251, s80\nglobal_store_dword v250, v251, s[{wsreg}:{wsreg+1}] offset:56\nv_mov_b32 v251, s82\nglobal_store_dword v250, v251, s[{wsreg}:{wsreg+1}] offset:60\ns_mov_b64 exec, -1")
SC=os.environ.get('SC','sc1')

def wlane(a,dst,ldw_s,perm,t):
    a(f"""v_lshrrev_b32 v{t}, 4, v0
v_bfe_u32 v{t+1}, v0, 2, 2
v_and_b32 v{t+2}, 1, v{t}
v_and_b32 v{t+3}, 3, v0
v_lshlrev_b32 v{t+4}, 1, v{t+2}
v_xor_b32 v{t+3}, v{t+3}, v{t+4}""")
    if perm=='id':  a(f"v_lshl_add_u32 v{dst}, v{t}, 2, v{t+1}")
    if perm=='nat': a(f"v_lshl_add_u32 v{dst}, v{t}, 3, v{t+1}")
    if perm=='att': a(f"v_lshrrev_b32 v{t+4}, 1, v{t}\nv_lshlrev_b32 v{t+4}, 4, v{t+4}\nv_lshl_add_u32 v{dst}, v{t+2}, 2, v{t+1}\nv_add_u32 v{dst}, v{dst}, v{t+4}")
    a(f"v_mul_lo_u32 v{dst}, v{dst}, {ldw_s}\nv_lshl_add_u32 v{dst}, v{t+3}, 4, v{dst}")
BMUL={'id':16,'nat':4,'att':8}
def trlane(a,dst,base_s,t):
    a(f"""v_lshrrev_b32 v{dst}, 2, v0
v_lshlrev_b32 v{dst}, 6, v{dst}
v_and_b32 v{t}, 3, v0
v_lshl_add_u32 v{dst}, v{t}, 3, v{dst}
v_bfe_u32 v{t}, v0, 4, 1
v_lshl_add_u32 v{dst}, v{t}, 5, v{dst}
v_add_u32 v{dst}, {base_s}, v{dst}
v_xor_b32 v{dst+1}, 32, v{dst}""")
def trreads(dst,adr,off=0):
    return [f"ds_read_b64_tr_b16 {vr(dst+4*h+2*b,2)}, v{adr+h} offset:{off+b*1024}" for h in range(2) for b in range(2)]
AV=int(os.environ.get('AV','1')); PRIO=int(os.environ.get('PRIO','0')); NORT=int(os.environ.get('NORT','0'))

WS_FL=42*MB; FL1=0; FL2=0x8000; FL3=0x10000; FL4=0x18000; FLW=0x20000; FL_SZ=0x28000
P_X,P_WO,P_W1,P_B1,P_W2,P_B2,P_OUT=88,90,92,94,96,98,100
SLP=int(os.environ.get('SLP','2'))
_uid=[0]
def poll(a,soff,cnt,t):
    _uid[0]+=1; L=f"poll{_uid[0]}"
    nld=max(cnt//64,1)
    a(f"v_and_b32 v{t}, {min(cnt,64)-1}, v0\nv_lshlrev_b32 v{t}, 7, v{t}")
    for i in range(1,nld): a(f"v_add_u32 v{t+i}, {i*8192}, v{t}")
    a(f"s_mov_b32 s63, 0x40000\n{L}:")
    for i in range(nld): a(f"buffer_load_dword v{t+4+i}, v{t+i}, s[36:39], s{soff} offen sc1")
    a("s_sub_u32 s63, s63, 1\ns_waitcnt vmcnt(0)")
    for i in range(1,nld): a(f"v_and_b32 v{t+4}, v{t+4}, v{t+4+i}")
    a(f"""v_cmp_eq_u32 vcc, 0, v{t+4}
s_cbranch_scc1 {L}x
s_cbranch_vccz {L}x
s_sleep {SLP}
s_branch {L}
{L}x:""")
def pollw(a,t):
    a(f"""s_mov_b32 s63, 0x40000
s_mov_b32 s24, {FLW}
pollw:
s_sub_u32 s63, s63, 1
s_waitcnt vmcnt(0)
v_and_b32 v{t+4}, v{t+4}, v{t+5}
v_and_b32 v{t+6}, v{t+6}, v{t+7}
v_and_b32 v{t+4}, v{t+4}, v{t+6}
v_cmp_eq_u32 vcc, 0, v{t+4}
s_cbranch_scc1 pollwx
s_cbranch_vccz pollwx
s_sleep 4
buffer_load_dwordx4 {vr(t+4,4)}, v{t}, s[36:39], s24 offen sc1
s_branch pollw
pollwx:""")
def setflag(a,soff,t):
    a(f"v_mov_b32 v{t}, 0\nv_mov_b32 v{t+1}, 1\ns_mov_b64 exec, 1\nbuffer_store_dword v{t+1}, v{t}, s[36:39], s{soff} offen\ns_mov_b64 exec, -1")
def handoff(a,soff,cnt,t):
    _uid[0]+=1; L=f"ho{_uid[0]}"
    srd(a,36,4,WS_FL,FL_SZ)
    a(f"s_barrier\ns_cmp_eq_u32 s62, 4\ns_cbranch_scc0 {L}")
    setflag(a,42,t); poll(a,soff,cnt,t)
    a(f"{L}:\ns_barrier")
def finish(a):
    o=[]
    for x in a.l:
        y=x.strip()
        if y.startswith('buffer_store'): x+=' sc1'
        elif y.startswith('buffer_load') and ' nt' not in y and ' sc1' not in y:
            x=x.replace(' lds',' sc1 lds') if y.endswith(' lds') else x+' sc1'
        o.append(x)
    a.l=o
```

```python
from common import *
import struct
def f2u(x): return hex(struct.unpack('<I',struct.pack('<f',x))[0])

def gemm(name, kind, nxt):
    cfg=dict(
      qkv =dict(BN=192,WM=2,TB=4,NF=6,KP=1,NS=3,K=1024,ldw=6144,wt=WS_WQ,act=WS_XN,perm='nat',xr=8),
      wo  =dict(BN=64, WM=4,TB=2,NF=4,KP=2,NS=3,K=1024,ldw=2048,wt=WS_WO, act=WS_O, perm='att',xr=4),
      ffn1=dict(BN=224,WM=2,TB=4,NF=7,KP=1,NS=3,K=1024,ldw=7168,wt=WS_W1, act=WS_H, perm='id', xr=8),
      ffn2=dict(BN=64, WM=4,TB=2,NF=4,KP=2,NS=3,K=3584,ldw=2048,wt=WS_W2, act=WS_G, perm='id', xr=4),
    )[kind]
    for kv in os.environ.get('CFG_'+kind,'').split():
        k_,v_=kv.split('='); cfg[k_]=int(v_)
    BN,WM,TB,NF,KP,NS,K,ldw=[cfg[k] for k in 'BN WM TB NF KP NS K ldw'.split()]
    KSS=2*KP
    KS=K//32; nst=KS//KSS
    CB=BN//32
    ACT_B=8*KSS*1024
    W_B=KSS*CB*2048
    STG=ACT_B+W_B
    lds=STG*NS
    a=A(); KID={'qkv':1,'wo':3,'ffn1':4,'ffn2':5}[kind]
    a(f'{name}:')
    stamp(a,-1); stamp(a,0)
    xr=cfg['xr']; lx={8:3,4:2}[xr]; nxr=16//xr; lnx={2:1,4:2}[nxr]; xc=32//xr
    a(f"""s_and_b32 s24, s2, 7
s_mov_b32 s8, s62
s_lshr_b32 s25, s2, 3
s_and_b32 s26, s24, {nxr-1}
s_lshl_b32 s26, s26, {lx}
s_and_b32 s9, s25, {xr-1}
s_add_u32 s9, s9, s26
s_lshr_b32 s26, s24, {lnx}
s_mul_i32 s26, s26, {xc}
s_lshr_b32 s10, s25, {lx}
s_add_u32 s10, s10, s26
s_cmp_lt_u32 s8, 4
s_cbranch_scc1 {name}_comp""")
    nA=8*KSS//4; nW=KSS*CB*2//4;
    assert (KSS*CB*2)%4==0 or True
    totW=KSS*CB*2; assert totW%4==0, totW
    n=nA+nW
    a("s_sub_u32 s8, s8, 4")
    a(f"""s_lshl_b32 s24, s9, 3
s_lshl_b32 s25, s8, 1
s_add_u32 s24, s24, s25
s_mul_i32 s24, s24, {KS*1024}
v_lshl_add_u32 v2, v0, 4, s24
v_add_u32 v3, {KS*1024}, v2""")
    a(f"s_mul_i32 s21, s10, {KS*CB*2048}\ns_mov_b32 s20, 0\ns_mul_i32 s24, s8, {nW*1024}\nv_lshl_add_u32 v4, v0, 4, s24\nv_add_u32 v5, 4096, v4")
    a(f"s_mul_i32 s44, s8, {2*KSS*1024}\ns_mul_i32 s45, s8, {nW*1024}\ns_add_u32 s45, s45, {ACT_B}")
    srd(a,12,4,cfg['act'],128*KS*1024)
    srd(a,16,4,cfg['wt'],K*ldw)
    def dmas(sa,sw,oa,ow):
        ad=[]; wd=[]
        for i in range(2):
            for ks in range(KSS):
                ad.append((f"s_add_u32 m0, {sa}, {oa+i*KSS*1024}", f"buffer_load_dwordx4 v{2+i}, s[12:15], s20 offen offset:{ks*1024} lds"))
        for j in range(nW):
            wd.append((f"s_add_u32 m0, {sw}, {ow+(j//4)*4096}", f"buffer_load_dwordx4 v{4+j//4}, s[16:19], s21 offen offset:{(j%4)*1024} lds"))
        def fl(z):
            r=[]; last=None
            for m,l in z:
                r.append((m+"\ns_nop 0\n" if m!=last else "")+l); last=m
            return r
        return fl(ad)+[f"s_add_u32 s20, s20, {KSS*1024}"], fl(wd)+[f"s_add_u32 s21, s21, {W_B}"]
    if kind=='wo':
        pollw(a,240)
    if kind=='qkv':
        for st in range(2):
            ad,wd=dmas('s44','s45',st*STG,st*STG); a.ext(wd+ad)
        a(f"s_waitcnt vmcnt({n})")
    else:
        for st in range(2): a.ext(dmas('s44','s45',st*STG,st*STG)[1])
        if kind=='wo': a(f"s_lshr_b32 s24, s9, 1\ns_lshl_b32 s24, s24, 12\ns_add_u32 s24, s24, {FL2}"); handoff(a,24,32,8)
        else: a(f"s_lshl_b32 s24, s9, 11\ns_add_u32 s24, s24, {FL3 if kind=='ffn1' else FL4}"); handoff(a,24,16,8)
        for st in range(2): a.ext(dmas('s44','s45',st*STG,st*STG)[0])
        a(f"s_waitcnt vmcnt({nA})")
    a(f"s_barrier\ns_mov_b32 s22, {2*STG}\ns_mov_b32 s23, 2\n{name}_ld:\ns_add_u32 s46, s22, s44\ns_add_u32 s47, s22, s45")
    ad,wd=dmas('s46','s47',0,0); a.ext(wd+ad)
    a(f"""s_add_u32 s22, s22, {STG}
s_cmp_eq_u32 s22, {lds}
s_cselect_b32 s22, 0, s22
s_add_u32 s23, s23, 1
s_cmp_lt_u32 s23, {NS}
s_cbranch_scc1 {name}_ld
s_waitcnt vmcnt({(NS-2)*n})
s_barrier
s_cmp_lt_u32 s23, {nst}
s_cbranch_scc1 {name}_ld""")
    PAR=163840-3072
    if kind=='ffn1':
        srd(a,28,4,WS_ST,16*S*8); srd(a,32,P_B1,0,F*2); srd(a,36,4,WS_CS,8*F*4)
        a(f"""s_lshl_b32 s24, s9, 10
s_lshl_b32 s25, s8, 8
s_add_u32 s24, s24, s25
v_and_b32 v6, 31, v0
v_lshrrev_b32 v7, 5, v0
v_lshlrev_b32 v7, 17, v7
v_lshl_add_u32 v7, v6, 3, v7""")
        for i in range(8): a(f"buffer_load_dwordx2 {vr(16+2*i,2)}, v7, s[28:31], s24 offen\ns_add_u32 s24, s24, {S*8}")
        a(f"""s_mul_i32 s24, s10, 224
s_lshl_b32 s25, s8, 6
s_add_u32 s24, s24, s25
v_add_u32 v8, s24, v0
v_lshlrev_b32 v9, 1, v8
v_lshlrev_b32 v8, 2, v8
buffer_load_ushort v12, v9, s[32:35], 0 offen
s_mov_b32 s24, 0""")
        for i in range(8): a(f"buffer_load_dword v{32+i}, v8, s[36:39], s24 offen\ns_add_u32 s24, s24, {F*4}")
    for b in range(nst-NS+2, nst+1):
        rem=max(nst-1-b,0)
        ex=17 if (kind=='ffn1' and b<nst) else 0
        a(f"s_waitcnt vmcnt({rem*n+ex})")
        if kind=='ffn1' and b==nst:
            for i in range(1,8): a(f"v_pk_add_f32 v[16:17], v[16:17], {vr(16+2*i,2)}\nv_add_f32 v32, v32, v{32+i}")
            a(f"""v_mov_b32 v18, v16
v_mov_b32 v19, v17
s_nop 1
v_permlane32_swap_b32 v16, v18
v_permlane32_swap_b32 v17, v19
s_mov_b32 s24, {f2u(1.0/D)}
s_mov_b32 s25, s24
v_pk_add_f32 v[16:17], v[16:17], v[18:19]
v_pk_mul_f32 v[16:17], v[16:17], s[24:25]
v_fma_f32 v17, -v16, v16, v17
v_max_f32 v17, 0, v17
v_add_f32 v17, {f2u(1e-5)}, v17
v_rsq_f32 v18, v17
s_lshl_b32 s24, s8, 8
s_add_u32 s24, s24, {PAR}
v_mul_f32 v19, v16, v18
v_sub_f32 v19, 0, v19
v_lshl_add_u32 v6, v6, 3, s24
ds_write_b64 v6, v[18:19]
v_lshlrev_b32 v12, 16, v12
v_lshl_add_u32 v6, v0, 2, s24
ds_write_b32 v6, v12 offset:1024
ds_write_b32 v6, v32 offset:2048
s_waitcnt lgkmcnt(0)""")
        a("s_barrier")
    if nxt:
        hi,lo={'qkv':('s10','s9'),'wo':('s9','s10'),'ffn1':('s9','s10')}[kind]
        a(f"s_lshl_b32 s24, {hi}, 11\ns_lshl_b32 s25, {lo}, 7\ns_add_u32 s24, s24, s25\ns_add_u32 s42, s24, {dict(qkv=FL1,wo=FL3,ffn1=FL4)[kind]}")
    a(f"s_branch {nxt}" if nxt else "s_endpgm")
    a(f"{name}_comp:")
    if kind!='qkv': a("s_waitcnt vmcnt(0)\ns_barrier")
    NACC=TB*NF*4; FR=KP*(TB+NF)*4
    ACC=16; F0=ACC+NACC; F1=F0+FR; VTOP=F1+FR
    acc=lambda tb,f: ACC+(tb*NF+f)*4
    fa=lambda Fb,kp,tb: Fb+kp*(TB+NF)*4+tb*4
    fw=lambda Fb,kp,f: Fb+kp*(TB+NF)*4+(TB+f)*4
    if WM==2: a("s_lshr_b32 s11, s8, 1\ns_and_b32 s3, s8, 1")
    else: a("s_mov_b32 s11, s8\ns_mov_b32 s3, 0")
    a(f"""v_and_b32 v1, 15, v0
v_lshrrev_b32 v2, 4, v0
s_mul_i32 s24, s11, {TB*KSS*1024}
v_lshl_add_u32 v3, v0, 4, s24
s_mul_i32 s24, s3, {NF*1024}
s_add_u32 s24, s24, {ACT_B}
v_lshl_add_u32 v4, v0, 4, s24
v_mov_b32 v6, v3
v_mov_b32 v7, v4""")
    def reads(Fb,ph):
        r=[]
        for kp in range(KP):
            ks=ph*KP+kp
            ra=[f"ds_read_b128 {vr(fa(Fb,kp,tb),4)}, v6 offset:{(tb*KSS+ks)*1024}" for tb in range(TB)]
            rw=[f"ds_read_b128 {vr(fw(Fb,kp,f),4)}, v7 offset:{(ks*CB*2+f)*1024}" for f in range(NF)]
            r+=rw[:1]+ra+rw[1:]
        return r
    def mfmas(Fb):
        r=[]
        for kp in range(KP):
            for f in range(NF):
                for tb in range(TB):
                    if kind=='qkv' and f>=4: r.append(mf16(acc(tb,f),fa(Fb,kp,tb),fw(Fb,kp,f)))
                    else: r.append(mf16(acc(tb,f),fw(Fb,kp,f),fa(Fb,kp,tb)))
        return r
    a(f"s_lshl_b32 s27, s9, 3\ns_mul_i32 s24, s11, {TB}\ns_add_u32 s27, s27, s24")
    T=VTOP
    for i in range(NACC): a(f"v_mov_b32 v{ACC+i}, 0")
    post=A(); fin=A()
    if kind=='wo':
        VTOP+=TB*NF*2
        srd(a,28,P_X,0,S*D*2)
        a(f"s_lshl_b32 s24, s27, 15\ns_lshl_b32 s25, s10, 7\ns_add_u32 s24, s24, s25\nv_lshlrev_b32 v9, 11, v1\nv_lshl_add_u32 v9, v2, 3, v9\ns_add_u32 s25, s24, 32768")
        for tb in range(TB):
            for f in range(NF):
                post(f"buffer_load_dwordx2 {vr(T+(tb*NF+f)*2,2)}, v9, s[28:31], s{24+tb} offen offset:{f*32}")
        for i in range(TB*NF*2):
            fin(f"v_lshlrev_b32 v12, 16, v{T+i}\nv_and_b32 v13, 0xffff0000, v{T+i}\nv_pk_add_f32 {vr(ACC+2*i,2)}, {vr(ACC+2*i,2)}, v[12:13]")
    if kind=='ffn2':
        VTOP+=TB*NF*2+NF*2
        srd(a,28,4,WS_H,4*MB); srd(a,32,P_B2,0,D*2); srd(a,36,P_OUT,0,S*D*2)
        a(f"s_lshl_b32 s24, s27, 15\ns_lshl_b32 s25, s10, 11\ns_add_u32 s24, s24, s25\ns_add_u32 s25, s24, 32768\nv_lshlrev_b32 v9, 4, v0\ns_lshl_b32 s26, s10, 7\nv_lshlrev_b32 v10, 3, v2")
        for tb in range(TB):
            for fp in range(NF//2):
                post(f"buffer_load_dwordx4 {vr(T+(tb*NF+2*fp)*2,4)}, v9, s[28:31], s{24+tb} offen offset:{fp*1024}")
        B=T+TB*NF*2
        for f in range(NF): post(f"buffer_load_dwordx2 {vr(B+2*f,2)}, v10, s[32:35], s26 offen offset:{f*32}")
        for i in range(NF*2):
            fin(f"v_lshlrev_b32 v12, 16, v{B+i}\nv_and_b32 v13, 0xffff0000, v{B+i}")
            for tb in range(TB): fin(f"v_pk_add_f32 {vr(ACC+tb*NF*4+2*i,2)}, {vr(ACC+tb*NF*4+2*i,2)}, v[12:13]")
        for i in range(TB*NF*2):
            fin(f"v_lshlrev_b32 v12, 16, v{T+i}\nv_and_b32 v13, 0xffff0000, v{T+i}\nv_pk_add_f32 {vr(ACC+2*i,2)}, {vr(ACC+2*i,2)}, v[12:13]")
    stamp(a,1)
    if kind!='qkv': a("s_barrier")
    a(f"s_mov_b32 s22, 0\ns_mov_b32 s23, {nst}\ns_barrier")
    stamp(a,2)
    a.ext(reads(F0,0)); a.ext(post.l)
    a(f".p2align 5\n{name}_loop:")
    a(f"s_add_u32 s22, s22, {STG}\ns_cmp_eq_u32 s22, {lds}\ns_cselect_b32 s22, 0, s22\ns_sub_u32 s23, s23, 1\ns_waitcnt lgkmcnt(0)")
    a.ext(interleave(mfmas(F0),reads(F1,1),per=1))
    a("v_add_u32 v6, s22, v3\nv_add_u32 v7, s22, v4\ns_cmp_lg_u32 s23, 0\ns_waitcnt lgkmcnt(0)\ns_barrier")
    a.ext(interleave(mfmas(F1),reads(F0,0),per=1))
    a(f"s_cbranch_scc1 {name}_loop")
    stamp(a,3)
    a("s_waitcnt vmcnt(0) lgkmcnt(0)\ns_nop 7"); a.ext(fin.l)
    P=F0
    def pack(dst,s0,s1):
        return [f"v_cvt_pk_bf16_f32 v{dst}, v{s0}, v{s0+1}",f"v_cvt_pk_bf16_f32 v{dst+1}, v{s0+2}, v{s0+3}",
                f"v_cvt_pk_bf16_f32 v{dst+2}, v{s1}, v{s1+1}",f"v_cvt_pk_bf16_f32 v{dst+3}, v{s1+2}, v{s1+3}"]
    if kind=='qkv':
        srd(a,28,4,WS_Q,4*MB); srd(a,32,4,WS_KV,8*MB)
        a(f"""s_lshl_b32 s24, s10, 1
s_add_u32 s24, s24, s3
s_lshl_b32 s24, s24, 6
s_lshr_b32 s25, s27, 1
s_add_u32 s24, s24, s25
s_lshl_b32 s25, s24, 12
s_lshl_b32 s24, s24, 11
s_add_u32 s26, s25, 4096
v_lshlrev_b32 v9, 9, v2
v_lshl_add_u32 v10, v1, 4, v9
v_lshrrev_b32 v11, 3, v1
v_lshlrev_b32 v11, 8, v11
v_and_b32 v12, 7, v1
v_lshl_add_u32 v11, v12, 4, v11
v_add_u32 v11, v11, v9
s_mov_b32 s44, {f2u(DH**-0.5*1.4426950408889634)}
s_mov_b32 s45, s44""")
        for tb in range(TB):
            a.ext(pack(P+tb*4,acc(tb,2),acc(tb,3)))
            a(f"buffer_store_dwordx4 {vr(P+tb*4,4)}, v11, s[32:35], s{25+(tb>>1)} offen offset:{(tb&1)*128}")
        for kb in range(2):
            for e in range(2):
                d=P+16+(kb*2+e)*4
                a.ext(pack(d,acc(2*kb,4+e),acc(2*kb+1,4+e)))
                a(f"buffer_store_dwordx4 {vr(d,4)}, v10, s[32:35], s{25+kb} offen offset:{2048+e*256}")
        for tb in range(TB):
            for i in range(4): a(f"v_pk_mul_f32 {vr(acc(tb,0)+2*i,2)}, {vr(acc(tb,0)+2*i,2)}, s[44:45]")
            d=P+32+tb*4
            a.ext(pack(d,acc(tb,0),acc(tb,1)))
            a(f"buffer_store_dwordx4 {vr(d,4)}, v10, s[28:31], s24 offen offset:{(tb>>1)*2048+(tb&1)*256}")
    if kind=='wo':
        srd(a,28,4,WS_H,4*MB); srd(a,32,4,WS_ST,16*S*8)
        a(f"s_lshl_b32 s24, s27, 15\ns_lshl_b32 s25, s10, 11\ns_add_u32 s24, s24, s25\ns_add_u32 s25, s24, 32768\nv_lshlrev_b32 v9, 4, v0")
        for tb in range(TB):
            for fp in range(2):
                d=P+(tb*2+fp)*4
                a.ext(pack(d,acc(tb,2*fp),acc(tb,2*fp+1)))
                a(f"buffer_store_dwordx4 {vr(d,4)}, v9, s[28:31], s{24+tb} offen offset:{fp*1024}")
        Q=P+16
        for tb in range(TB):
            a(f"v_mov_b32 v{Q+4*tb}, 0\nv_mov_b32 v{Q+4*tb+1}, 0")
            for i in range(8):
                a(f"""v_lshlrev_b32 v12, 16, v{P+tb*8+i}
v_and_b32 v13, 0xffff0000, v{P+tb*8+i}
v_add_f32 v{Q+4*tb}, v{Q+4*tb}, v12
v_fmac_f32 v{Q+4*tb+1}, v12, v12
v_add_f32 v{Q+4*tb}, v{Q+4*tb}, v13
v_fmac_f32 v{Q+4*tb+1}, v13, v13""")
        for sw in ('16','32'):
            for tb in range(TB):
                t=Q+4*tb; a(f"v_mov_b32 v{t+2}, v{t}\nv_mov_b32 v{t+3}, v{t+1}")
            a("s_nop 1")
            for tb in range(TB):
                t=Q+4*tb; a(f"v_permlane{sw}_swap_b32 v{t}, v{t+2}\nv_permlane{sw}_swap_b32 v{t+1}, v{t+3}")
            a("s_nop 1")
            for tb in range(TB):
                t=Q+4*tb; a(f"v_pk_add_f32 {vr(t,2)}, {vr(t,2)}, {vr(t+2,2)}")
        a(f"""v_cmp_eq_u32 vcc, 1, v2
s_lshl_b32 s24, s27, 7
s_lshl_b32 s25, s10, 14
s_add_u32 s24, s24, s25
v_lshlrev_b32 v9, 3, v0
v_cndmask_b32 v{Q}, v{Q}, v{Q+4}, vcc
v_cndmask_b32 v{Q+1}, v{Q+1}, v{Q+5}, vcc
s_mov_b32 exec_hi, 0
buffer_store_dwordx2 {vr(Q,2)}, v9, s[32:35], s24 offen""")
    if kind=='ffn2':
        a(f"""s_lshl_b32 s24, s27, 15
s_lshl_b32 s25, s10, 7
s_add_u32 s24, s24, s25
s_add_u32 s25, s24, 32768
v_lshlrev_b32 v9, 11, v1
v_and_b32 v10, 1, v2
v_lshl_add_u32 v9, v10, 5, v9
v_lshrrev_b32 v10, 1, v2
v_lshl_add_u32 v9, v10, 4, v9""")
        for tb in range(TB):
            for fp in range(2):
                a.ext(pack(P+(tb*2+fp)*4,acc(tb,2*fp),acc(tb,2*fp+1)))
        a("s_nop 1")
        for tb in range(TB):
            for fp in range(2):
                d=P+(tb*2+fp)*4
                a(f"v_permlane16_swap_b32 v{d}, v{d+2}\nv_permlane16_swap_b32 v{d+1}, v{d+3}")
                a(f"buffer_store_dwordx4 {vr(d,4)}, v9, s[36:39], s{24+tb} offen offset:{fp*64}")
    if kind=='ffn1':
        srd(a,28,4,WS_G,14*MB)
        c0=-2*1.4426950408889634*0.7978845608028654; c1=c0*0.044715
        RS=P+24; BB=RS+8; CS=BB+28; assert CS+28<=VTOP
        a(f"""s_lshl_b32 s24, s11, 9
s_add_u32 s24, s24, {PAR}
v_lshl_add_u32 v9, v1, 3, s24
s_mul_i32 s24, s3, 448
s_add_u32 s24, s24, {PAR}
v_lshl_add_u32 v10, v2, 4, s24""")
        for tb in range(TB): a(f"ds_read_b64 {vr(RS+2*tb,2)}, v9 offset:{tb*128}")
        for f in range(NF): a(f"ds_read_b128 {vr(BB+4*f,4)}, v10 offset:{1024+f*64}\nds_read_b128 {vr(CS+4*f,4)}, v10 offset:{2048+f*64}")
        a(f"""s_mov_b32 s44, {f2u(c1)}
s_mov_b32 s45, s44
v_mov_b32 v12, {f2u(c0)}
v_mov_b32 v13, v12
s_mul_i32 s24, s27, {112*1024}
s_mul_i32 s25, s10, {7*1024}
s_add_u32 s24, s24, s25
s_mul_i32 s25, s3, {4*1024}
s_add_u32 s48, s24, s25
s_lshl_b32 s25, s3, 9
s_add_u32 s52, s24, s25
s_add_u32 s52, s52, {3*1024}
s_add_u32 s54, s52, {2*112*1024}
v_lshlrev_b32 v9, 4, v0
v_and_b32 v10, 1, v2
v_mul_u32_u24 v10, {112*1024}, v10
v_lshl_add_u32 v10, v1, 4, v10
v_lshrrev_b32 v11, 1, v2
v_lshl_add_u32 v10, v11, 8, v10""")
        for tb in range(1,TB): a(f"s_add_u32 s{48+tb}, s48, {tb*112*1024}")
        a("s_waitcnt lgkmcnt(0)")
        def gelu(tb,f,t):
            r=[]; x=acc(tb,f); rs=vr(RS+2*tb,2)
            for e in (0,2): r.append(f"v_pk_fma_f32 {vr(t+e,2)}, {vr(CS+4*f+e,2)}, {rs}, {vr(BB+4*f+e,2)} op_sel:[0,1,0] op_sel_hi:[1,1,1]")
            for e in (0,2): r.append(f"v_pk_fma_f32 {vr(x+e,2)}, {vr(x+e,2)}, {rs}, {vr(t+e,2)} op_sel_hi:[1,0,1]")
            for e in (0,2): r.append(f"v_pk_mul_f32 {vr(t+e,2)}, {vr(x+e,2)}, {vr(x+e,2)}")
            for e in (0,2): r.append(f"v_pk_fma_f32 {vr(t+e,2)}, {vr(t+e,2)}, s[44:45], v[12:13]")
            for e in (0,2): r.append(f"v_pk_mul_f32 {vr(t+e,2)}, {vr(t+e,2)}, {vr(x+e,2)}")
            for e in range(4): r.append(f"v_exp_f32 v{t+e}, v{t+e}")
            for e in (0,2): r.append(f"v_pk_add_f32 {vr(t+e,2)}, {vr(t+e,2)}, 1.0 op_sel_hi:[1,0]")
            for e in range(4): r.append(f"v_rcp_f32 v{t+e}, v{t+e}")
            for e in (0,2): r.append(f"v_pk_mul_f32 {vr(x+e,2)}, {vr(x+e,2)}, {vr(t+e,2)}")
            return r
        for wn in range(2):
            if wn==0: a(f"s_cmp_eq_u32 s3, 1\ns_cbranch_scc1 {name}_ep1")
            else: a(f"{name}_ep1:")
            cnt=0
            fo=6 if wn==0 else 0
            for tb in (0,2):
                for x,y in zip(gelu(tb,fo,P),gelu(tb+1,fo,P+4)): a(x); a(y)
                d=P+8+(cnt%4)*4; cnt+=1
                a.ext(pack(d,acc(tb,fo),acc(tb+1,fo)))
                a(f"s_nop 1\nv_permlane16_swap_b32 v{d}, v{d+2}\nv_permlane16_swap_b32 v{d+1}, v{d+3}\nbuffer_store_dwordx4 {vr(d,4)}, v10, s[28:31], s{52+tb} offen")
            for tb in range(TB):
                for fp in range(3):
                    for x,y in zip(gelu(tb,wn+2*fp,P),gelu(tb,wn+2*fp+1,P+4)): a(x); a(y)
                    d=P+8+(cnt%4)*4; cnt+=1
                    a.ext(pack(d,acc(tb,wn+2*fp),acc(tb,wn+2*fp+1)))
                    a(f"buffer_store_dwordx4 {vr(d,4)}, v9, s[28:31], s{48+tb} offen offset:{fp*1024}")
            if wn==0:
                a(f"s_branch {name}_done")
    a(f"{name}_done:")
    stamp(a,4)
    a("s_mov_b64 exec, -1")
    stamp_out(a,KID,5)
    if not nxt: a("s_endpgm")
    assert VTOP<=250 and lds<=PAR, VTOP
    finish(a)
    return a.txt()
```

```python
from common import *
from gemm import f2u

def xreduce(a, regs, tmp, op="v_add_f32", sws=('16','32')):
    for sw in sws:
        for r,t in zip(regs,tmp): a(f"v_mov_b32 v{t}, v{r}")
        a("s_nop 1")
        for r,t in zip(regs,tmp): a(f"v_permlane{sw}_swap_b32 v{r}, v{t}")
        a("s_nop 1")
        for r,t in zip(regs,tmp): a(f"{op} v{r}, v{r}, v{t}")

def ln1(name):
    a=A()
    X=16; U=32; R=64
    a(f"""s_cmp_ge_u32 s2, 256
s_cbranch_scc1 {name}_end
s_load_dwordx4 s[4:7], s[0:1], {KA_X}
s_load_dwordx2 s[8:9], s[0:1], {KA_WS}""")
    stamp(a,-1); stamp(a,0)
    a(f"""v_lshrrev_b32 v1, 6, v0
v_and_b32 v0, 63, v0
v_and_b32 v2, 7, v0
v_readfirstlane_b32 s10, v1
v_lshrrev_b32 v3, 3, v0
v_lshlrev_b32 v4, 11, v2
v_lshl_add_u32 v4, v3, 4, v4
s_lshl_b32 s20, s2, 14
s_lshl_b32 s21, s10, 9
s_add_u32 s21, s21, s20
s_movk_i32 s30, 6144
s_waitcnt lgkmcnt(0)""")
    srd(a,12,4,0,S*D*2)
    for i in range(4): a(f"buffer_load_dwordx4 {vr(X+4*i,4)}, v4, s[12:15], s21 offen offset:{i*128}")
    srd(a,16,8,WS_FL,FL_SZ)
    a("v_lshlrev_b32 v8, 2, v0\nv_mov_b32 v9, 0\ns_lshl_b32 s22, s2, 10\ns_lshl_b32 s23, s10, 8\ns_add_u32 s22, s22, s23\nbuffer_store_dword v9, v8, s[16:19], s22 offen")
    wlane(a,10,'s30','nat',11)
    srd(a,24,6,0,D*3*D*2)
    a(f"""s_lshr_b32 s31, s2, 3
s_and_b32 s32, s2, 7
s_lshl_b32 s32, s32, 2
s_add_u32 s32, s32, s10
s_mul_i32 s33, s31, {32*6144}
s_lshl_b32 s34, s32, 6
s_add_u32 s33, s33, s34
s_mul_i32 s35, s10, 6144
s_add_u32 s35, s35, 1024""")
    for pt in range(3):
        for b in range(2):
            a(f"s_add_u32 m0, s35, {pt*2048+b*1024}\ns_add_u32 s34, s33, {pt*2048+b*4*6144}\nbuffer_load_dwordx4 v10, s[24:27], s34 offen lds")
    trlane(a,14,'s35',11)
    srd(a,16,8,WS_XN,4*MB); srd(a,24,8,WS_WQ,6*MB)
    a(f"""s_lshr_b32 s33, s32, 1
s_lshl_b32 s33, s33, 5
s_add_u32 s33, s33, s31
s_mul_i32 s33, s33, {12*1024}
s_and_b32 s34, s32, 1
s_mul_i32 s34, s34, 6144
s_add_u32 s33, s33, s34
s_add_u32 s34, s33, 4096
s_lshr_b32 s22, s2, 1
s_lshl_b32 s22, s22, 15
s_and_b32 s23, s2, 1
s_lshl_b32 s23, s23, 7
s_add_u32 s22, s22, s23
s_lshl_b32 s23, s10, 13
s_add_u32 s22, s22, s23
s_add_u32 s23, s22, 4096
v_lshlrev_b32 v5, 4, v2
s_lshl_b32 s36, s10, 2
v_add_u32 v6, s36, v5
v_lshl_add_u32 v7, v3, 8, v5
v_mov_b32 v8, 0
v_mov_b32 v9, 0""")
    for i in range(4):
        a(f"s_waitcnt vmcnt({10-i})")
        for j in range(4):
            r=4*i+j
            a(f"v_lshlrev_b32 v{U+2*r}, 16, v{X+r}\nv_and_b32 v{U+2*r+1}, 0xffff0000, v{X+r}\nv_pk_add_f32 v[8:9], v[8:9], {vr(U+2*r,2)}")
    def wgreduce(off):
        a("v_add_f32 v8, v8, v9\ns_nop 1\nv_add_f32_dpp v8, v8, v8 row_ror:8 row_mask:0xf bank_mask:0xf")
        xreduce(a,[8],[9])
        a(f"""ds_write_b32 v6, v8 offset:{off}
s_waitcnt lgkmcnt(0)
s_barrier
ds_read_b128 v[{R}:{R+3}], v5 offset:{off}
s_waitcnt lgkmcnt(0)
v_add_f32 v12, v{R}, v{R+1}
v_add_f32 v13, v{R+2}, v{R+3}
v_add_f32 v12, v12, v13""")
    stamp(a,1)
    wgreduce(0)
    stamp(a,2)
    a(f"v_mul_f32 v10, {f2u(-1.0/D)}, v12\nv_mov_b32 v8, 0\nv_mov_b32 v9, 0")
    for r in range(16): a(f"v_pk_add_f32 {vr(U+2*r,2)}, {vr(U+2*r,2)}, v[10:11] op_sel_hi:[1,0]")
    for r in range(16): a(f"v_pk_fma_f32 v[8:9], {vr(U+2*r,2)}, {vr(U+2*r,2)}, v[8:9]")
    wgreduce(256)
    a(f"v_mov_b32 v13, {f2u(1e-5)}\nv_fmac_f32 v13, {f2u(1.0/D)}, v12\nv_rsq_f32 v10, v13\ns_nop 0")
    for i in range(4):
        for j in range(4):
            r=4*i+j
            a(f"v_pk_mul_f32 {vr(U+2*r,2)}, {vr(U+2*r,2)}, v[10:11] op_sel_hi:[1,0]")
        for j in range(4):
            r=4*i+j
            a(f"v_cvt_pk_bf16_f32 v{X+r}, v{U+2*r}, v{U+2*r+1}")
        a(f"buffer_store_dwordx4 {vr(X+4*i,4)}, v7, s[16:19], s{22+(i>>1)} offen offset:{(i&1)*2048}")
    stamp(a,3)
    a("v_lshlrev_b32 v7, 4, v0\ns_waitcnt vmcnt(4)")
    for pt in range(3): a.ext(trreads(R+8*pt,14,pt*2048))
    for f in range(6):
        if f%2==0: a(f"s_waitcnt lgkmcnt({0 if STAMP else 8-4*(f//2)})")
        a(f"buffer_store_dwordx4 {vr(R+4*f,4)}, v7, s[24:27], s{33+f//4} offen offset:{(f%4)*1024}")
    stamp(a,4); stamp_out(a,0,5,8,'s10')
    a(f"{name}_end:\ns_endpgm")
    if SC: a.l=[x+' '+SC if x.strip().startswith('buffer_store') else x for x in a.l]
    return dict(name=name,text=khead(name)+a.txt(),desc=kdesc(name,256 if STAMP else 88,96),grid=256,block=256,lds=1024+4*6144)

def attn(name):
    a=A()
    a(f'{name}:')
    stamp(a,-1); stamp(a,0)
    B=[dict(SA=16,SB=32,O=48,L=64,NM=68,Q=84,P=92),dict(SA=100,SB=116,O=132,L=148,NM=152,Q=168,P=176)]
    Kf=184; Vf=192; ON=200; WT=204; CSA=212; ON1=220; VT=224; STG=0x20000
    a(f"""s_and_b32 s24, s2, 7
s_mov_b32 s8, s62
s_lshr_b32 s25, s2, 3
s_lshl_b32 s9, s24, 2
s_lshr_b32 s26, s25, 3
s_add_u32 s9, s9, s26
s_and_b32 s25, s25, 7
s_and_b32 s3, s8, 3
s_lshr_b32 s11, s8, 2
s_lshl_b32 s10, s25, 2
s_add_u32 s10, s10, s3
v_lshlrev_b32 v2, 4, v0
s_lshl_b32 s24, s9, 18
s_lshl_b32 s44, s8, 12
s_lshl_b32 s25, s11, 17
s_lshl_b32 s26, s3, 12
s_add_u32 s25, s25, s26
v_add_u32 v3, s25, v2
s_lshl_b32 s45, s11, 14
v_add_u32 v4, s45, v2
s_mov_b32 s40, 0
s_cmp_eq_u32 s8, 0
s_cselect_b32 s41, 1, 0
s_cmp_lt_u32 s2, 112
s_cselect_b32 s43, 2, 0
s_mov_b32 s60, 0
s_mov_b32 s61, 0
s_add_u32 s12, s4, s24
s_addc_u32 s13, s5, 0
s_add_u32 s12, s12, {hex(WS_KV)}
s_addc_u32 s13, s13, 0
s_mov_b32 s14, 0x40000
s_mov_b32 s15, 0x20000""")
    srd(a,16,4,WS_Q,4*MB)
    def dma():
        return ["s_add_u32 m0, s22, s44","s_add_u32 s22, s22, 0x8000"]+[f"buffer_load_dwordx4 v3, s[12:15], s20 offen offset:{i*1024} lds" for i in range(4)]+["s_add_u32 s20, s20, 0x4000","s_and_b32 s22, s22, 0x1ffff"]
    a(f"""s_cmp_lt_u32 s2, 112
s_cbranch_scc0 {name}_rt2""")
    srd(a,28,P_W1,0,D*F*2); srd(a,32,4,WS_W1,D*F*2)
    a(f"""s_movk_i32 s56, {F*2}
s_mul_i32 s60, s2, 4682
s_lshr_b32 s60, s60, 16
s_mul_i32 s25, s60, 14
s_sub_u32 s25, s2, s25
s_lshl_b32 s61, s25, 3
s_add_u32 s61, s61, s8
s_mul_i32 s50, s60, {128*F*2}
s_lshl_b32 s24, s61, 6
s_add_u32 s50, s50, s24
s_mov_b32 s51, {32*F*2}
s_mov_b32 s52, {16*F*2}
s_mul_i32 s24, s61, 9363
s_lshr_b32 s24, s24, 16
s_mul_i32 s25, s24, 7
s_sub_u32 s25, s61, s25
s_lshl_b32 s24, s24, 5
s_lshl_b32 s26, s60, 2
s_add_u32 s24, s24, s26
s_mul_i32 s24, s24, 7
s_add_u32 s24, s24, s25
s_lshl_b32 s53, s24, 11
s_movk_i32 s54, {7*2048}
s_movk_i32 s55, {7*2048}""")
    wlane(a,10,'s56','id',11)
    a(f"""s_branch {name}_rt9
{name}_rt2:
s_movk_i32 s56, 2048
s_movk_i32 s51, 64
s_movk_i32 s54, 2048
s_cmp_lt_u32 s2, 224
s_cbranch_scc0 {name}_rt3""")
    srd(a,28,P_W2,0,D*F*2); srd(a,32,4,WS_W2,D*F*2)
    a(f"""s_sub_u32 s26, s2, 112
s_mul_i32 s53, s8, {2*112*4096}
s_mov_b32 s55, {112*4096-2048}
s_mul_i32 s24, s26, 9363
s_lshr_b32 s24, s24, 16
s_mul_i32 s25, s24, 7
s_sub_u32 s25, s26, s25
s_cmp_eq_u32 s25, 3
s_cbranch_scc1 {name}_rt2n
s_mov_b32 s52, {16*2048}""")
    wlane(a,10,'s56','id',11)
    a(f"s_branch {name}_rt8\n{name}_rt2n:\ns_movk_i32 s52, {4*2048}")
    wlane(a,10,'s56','nat',11)
    a(f"s_branch {name}_rt8\n{name}_rt3:")
    srd(a,28,P_WO,0,D*D*2); srd(a,32,4,WS_WO,D*D*2)
    a(f"s_sub_u32 s26, s2, 224\ns_mul_i32 s53, s8, {2*32*4096}\ns_mov_b32 s55, {32*4096-2048}\ns_movk_i32 s52, {8*2048}")
    wlane(a,10,'s56','att',11)
    a(f"""{name}_rt8:
s_lshl_b32 s50, s26, 16
s_lshl_b32 s24, s8, 8
s_add_u32 s50, s50, s24
s_lshl_b32 s24, s26, 12
s_add_u32 s53, s53, s24
{name}_rt9:
s_add_u32 s57, s44, {STG}""")
    trlane(a,12,'s57',11)
    for i in range(8): a(f"v_mov_b32 v{CSA+i}, 0")
    for i in range(4): a(f"v_mov_b32 v{ON1+i}, 0x3f803f80")
    a(f"""s_sub_u32 s53, s53, s54
s_sub_u32 s53, s53, s55
v_add_u32 v11, s57, v2
ds_write_b128 v11, {vr(CSA,4)} offset:2048
ds_write_b128 v11, {vr(CSA,4)} offset:3072
v_xor_b32 v12, 0x800, v12
v_xor_b32 v13, 0x800, v13""")
    if NORT: a("s_mov_b32 s50, 0x7f000000\ns_mov_b32 s53, s50")
    a(f"s_lshr_b32 s24, s9, 1\ns_lshl_b32 s24, s24, 11\ns_add_u32 s24, s24, {FL1}\ns_waitcnt vmcnt(0)"); handoff(a,24,16,16)
    stamp(a,1)
    a(f"""s_lshl_b32 s24, s9, 5
s_add_u32 s24, s24, s10
s_lshl_b32 s24, s24, 12""")
    for i in range(4): a(f"buffer_load_dwordx4 {vr(B[i>>1]['Q']+4*(i&1),4)}, v2, s[16:19], s24 offen offset:{i*1024}")
    a(f"s_mov_b32 s20, 0\ns_mov_b32 s22, 0")
    a.ext(dma())
    a(f"{name}_restart:")
    srd(a,16,4,WS_O,4*MB)
    a(f"""v_lshrrev_b32 v8, 4, v0
v_lshrrev_b32 v5, 2, v0
v_xor_b32 v8, v8, v5
v_and_b32 v8, 1, v8
v_cmp_eq_u32 vcc, 0, v8
v_mov_b32 v5, 0x3f803f80
s_nop 1""")
    for i in range(4): a(f"v_cndmask_b32 v{ON+i}, 0, v5, vcc")
    for b in B:
        for i in range(20): a(f"v_mov_b32 v{b['O']+i}, 0")
        for i in range(4): a(f"v_mov_b32 v{b['P']+4+i}, 0")
    for i in range(4): a(f"v_mov_b32 v{Vf+4+i}, 0")
    a(f"""v_mov_b32 v6, v4
v_add_u32 v7, 0x8000, v4
s_mov_b32 s23, 8
s_mov_b32 s21, 0x8000
s_waitcnt vmcnt(0)
s_barrier
ds_read_b128 {vr(WT,4)}, v2
ds_read_b128 {vr(WT+4,4)}, v2 offset:1024
ds_read_b128 {vr(Kf,4)}, v6
ds_read_b128 {vr(Kf+4,4)}, v6 offset:1024
s_cmp_lg_u32 s40, 0
s_cbranch_scc1 {name}_havemax
s_waitcnt lgkmcnt(2)""")
    for b in B: a(mf32(b['SA'],WT,b['Q'],'0'))
    for b in B: a(mf32(b['SA'],WT+4,b['Q']+4))
    a("s_nop 11")
    for m,b in zip((14,15),B):
        SA=b['SA']; a(f"v_max3_f32 v{m}, v{SA}, v{SA+1}, v{SA+2}")
        for i in range(3,15,2): a(f"v_max3_f32 v{m}, v{SA+i}, v{SA+i+1}, v{m}")
        a(f"v_max_f32 v{m}, v{SA+15}, v{m}")
    xreduce(a,[14,15],[8,9],"v_max_f32",('32',))
    a(f"{name}_havemax:")
    stamp(a,2)
    for m,b in zip((14,15),B):
        for i in range(16): a(f"v_sub_f32 v{b['NM']+i}, 0, v{m}")
    a("s_waitcnt lgkmcnt(0)")
    for i in range(8): a(f"v_mov_b32 v{WT+i}, 0")
    for b in B: a(mf32(b['SA'],Kf,b['Q'],vr(b['NM'],16)))
    for b in B: a(mf32(b['SA'],Kf+4,b['Q']+4))
    a.ext(dma()+dma())
    a(f"""ds_read_b128 {vr(Kf,4)}, v6 offset:4096
ds_read_b128 {vr(Kf+4,4)}, v6 offset:{4096+1024}
ds_read_b128 {vr(Vf,4)}, v6 offset:2048
s_waitcnt lgkmcnt(0)
s_nop 7
.p2align 5
{name}_loop:""")
    def rd(dst,t,off):
        return [f"ds_read_b128 {vr(dst,4)}, v{6 if t<4 else 7} offset:{(t%4)*4096+off}"]
    ex=lambda s,i: f"v_exp_f32 v{s+i}, v{s+i}"
    cv=lambda d,s: f"v_cvt_pk_bf16_f32 v{d}, v{s}, v{s+1}"
    for t in range(4):
        if t==2: a("s_waitcnt vmcnt(8)\ns_barrier")
        X=[[],[],[],[]]; W2=2
        kv=lambda i: [f"buffer_load_dwordx4 v3, s[12:15], s20 offen offset:{i*1024} lds"]
        if t==0: a(f"s_cmp_eq_u32 s23, s43\ns_cbranch_scc1 {name}_cs\n{name}_csr:")
        if t==2: a(f"s_cmp_eq_u32 s23, s41\ns_cbranch_scc1 {name}_wf\n{name}_wfr:")
        if t==2: X[0]=["s_add_u32 m0, s22, s44","s_add_u32 s22, s22, 0x8000","s_and_b32 s22, s22, 0x1ffff"]; X[1]=kv(0); X[3]=kv(1)
        if t==3: X[0]=kv(2); X[1]=trreads(WT,12); W2=6; X[2]=kv(3); X[3]=["s_add_u32 s20, s20, 0x4000","v_xor_b32 v12, 0x800, v12","v_xor_b32 v13, 0x800, v13"]
        if t==0:
            X[0]=["s_sub_u32 s24, s23, 3","s_cmp_lt_u32 s24, 4","s_cselect_b32 s25, s53, 0x7f000000",f"buffer_store_dwordx4 {vr(WT,4)}, v2, s[32:35], s25 offen"]
            X[1]=[mf16(CSA,WT,ON1),"s_add_u32 s53, s53, s54","s_mov_b32 s24, s54"]
            X[2]=["s_mov_b32 s54, s55","s_mov_b32 s55, s24",f"buffer_store_dwordx4 {vr(WT+4,4)}, v2, s[32:35], s25 offen offset:1024"]
            X[3]=[mf16(CSA+4,WT+4,ON1)]
        if t==1:
            X[0]=["s_cmp_gt_u32 s23, 4","s_mov_b32 m0, s57","s_cselect_b32 s25, s50, 0x7f000000","buffer_load_dwordx4 v10, s[28:31], s25 offen nt lds"]
            X[2]=["s_add_u32 m0, s57, 1024","s_add_u32 s25, s25, s52","buffer_load_dwordx4 v10, s[28:31], s25 offen nt lds"]
            X[3]=["s_add_u32 s50, s50, s51","s_xor_b32 s57, s57, 0x800"]
        x=[]
        for b in B:
            C,N=(b['SA'],b['SB']) if t%2==0 else (b['SB'],b['SA'])
            x.append(dict(E=[ex(C,i) for i in range(16)],Cv=[cv(b['P']+i,C+2*i) for i in range(8)],
              qk0=[mf32(N,Kf,b['Q'],vr(b['NM'],16))],qk1=[mf32(N,Kf+4,b['Q']+4)],pv1=[mf32(b['O'],Vf+4,b['P']+4)],pv0=[mf32(b['O'],Vf,b['P'])],
              l1=[mf16(b['L'],ON,b['P']+4)],l0=[mf16(b['L'],ON,b['P'])]))
        u,v=x; W=["s_waitcnt lgkmcnt(2)"]
        tail=["s_add_u32 s21, s21, 0x8000","s_and_b32 s21, s21, 0x1ffff","s_sub_u32 s23, s23, 1","s_cmp_lg_u32 s23, 0","v_mov_b32 v6, v7","v_add_u32 v7, s21, v4"] if t==3 else []
        a(f's_setprio {3-((t+2)%4)}')
        a.ext(W+u['qk0']+u['E'][0:4]+v['qk0']+rd(Kf,t+2,0)+u['E'][4:8]+u['pv1']+X[0]+v['E'][0:4]+v['pv1']+rd(Vf+4,t,3072)+v['E'][4:8]+X[1]+u['l1']+u['Cv'][0:4]+v['l1']+v['Cv'][0:4])
        a.ext([f"s_waitcnt lgkmcnt({W2})"]+u['qk1']+u['E'][8:12]+v['qk1']+rd(Kf+4,t+2,1024)+u['E'][12:16]+u['pv0']+X[2]+v['E'][8:12]+v['pv0']+rd(Vf,t+1,2048)+v['E'][12:16]+X[3]+u['l0']+u['Cv'][4:8]+v['l0']+tail+v['Cv'][4:8])
    a(f"s_cbranch_scc1 {name}_loop\ns_setprio 0\ns_waitcnt lgkmcnt(0)")
    for b in B: a(mf32(b['O'],Vf+4,b['P']+4)); a(mf16(b['L'],ON,b['P']+4))
    stamp(a,3)
    O=B[0]['O']; L=B[0]['L']; P=B[0]['P']; O1=B[1]['O']; X=B[0]['SA']
    a(f"""s_mul_i32 s24, s8, 5120
s_xor_b32 s25, s8, 4
s_mul_i32 s25, s25, 5120
v_add_u32 v8, s24, v2
v_add_u32 v9, s25, v2
s_waitcnt vmcnt(0)
s_barrier
s_nop 7
s_cmp_eq_u32 s11, 0
s_cbranch_scc1 {name}_m0""")
    for i in range(20): a(f"v_swap_b32 v{O+i}, v{O1+i}")
    a(f"{name}_m0:")
    for i in range(5): a(f"ds_write_b128 v8, {vr(O1+4*i,4)} offset:{i*1024}")
    a("s_waitcnt lgkmcnt(0)\ns_barrier")
    for i in range(5): a(f"ds_read_b128 {vr(X+4*i,4)}, v9 offset:{i*1024}")
    a("s_waitcnt lgkmcnt(0)")
    for i in range(9): a(f"v_pk_add_f32 {vr(O+2*i,2)}, {vr(O+2*i,2)}, {vr(X+2*i,2)}")
    a(f"s_cmp_lg_u32 s40, 0\ns_cbranch_scc1 {name}_finb\nv_mov_b32 v8, v{L}")
    for i in range(16): a(f"v_fma_f32 v8, v{O+i}, 0, v8")
    a(f"""v_cmp_ngt_f32 vcc, {f2u(2.0**60)}, v8
s_lshl_b32 s25, s8, 2
s_add_u32 s25, s25, 0x27fe0
v_mov_b32 v10, s25
s_cmp_lg_u64 vcc, 0
s_cselect_b32 s24, 1, 0
v_mov_b32 v9, s24
ds_write_b32 v10, v9
s_waitcnt lgkmcnt(0)
s_barrier
v_and_b32 v10, 7, v0
v_lshlrev_b32 v10, 2, v10
v_add_u32 v10, 0x27fe0, v10
ds_read_b32 v9, v10
s_waitcnt lgkmcnt(0)
v_cmp_ne_u32 vcc, 0, v9
s_nop 1
s_cmp_eq_u64 vcc, 0
s_cbranch_scc1 {name}_fin
s_barrier
s_mov_b32 s40, 2
v_mov_b32 v9, 0
ds_write_b32 v10, v9
s_mov_b32 s20, 0
v_mov_b32 v14, 0xff800000
v_mov_b32 v15, 0xff800000
{name}_mx:
buffer_load_dwordx4 {vr(Kf,4)}, v2, s[12:15], s20 offen
buffer_load_dwordx4 {vr(Kf+4,4)}, v2, s[12:15], s20 offen offset:1024
s_add_u32 s20, s20, 0x1000
s_waitcnt vmcnt(0)""")
    for b in B: a(mf32(b['SA'],Kf,b['Q'],'0'))
    for b in B: a(mf32(b['SA'],Kf+4,b['Q']+4))
    a("s_nop 15")
    for m,b in zip((14,15),B):
        for i in range(0,16,2): a(f"v_max3_f32 v{m}, v{b['SA']+i}, v{b['SA']+i+1}, v{m}")
    a(f"s_cmp_lt_u32 s20, 0x40000\ns_cbranch_scc1 {name}_mx")
    xreduce(a,[14,15],[8,9],"v_max_f32",('32',))
    a(f"s_mov_b32 s20, 0\ns_mov_b32 s22, 0")
    a.ext(dma())
    a(f"""s_mov_b32 s50, 0x7f000000
s_mov_b32 s53, s50
s_branch {name}_restart
{name}_wf:
s_lshl_b32 s24, s2, 2
s_add_u32 s24, s24, {FLW}
v_mov_b32 v8, 0
v_mov_b32 v9, 1
s_mov_b64 exec, 1
buffer_store_dword v9, v8, s[36:39], s24 offen
s_mov_b64 exec, -1
s_branch {name}_wfr
{name}_cs:
s_add_u32 s48, s4, {WS_CS}
s_addc_u32 s49, s5, 0
s_mul_i32 s24, s60, {F*4}
s_lshl_b32 s25, s61, 7
s_add_u32 s24, s24, s25
v_and_b32 v8, 1, v0
v_cmp_eq_u32 vcc, 1, v8
v_lshlrev_b32 v8, 6, v8
v_lshrrev_b32 v9, 4, v0
v_lshl_add_u32 v8, v9, 4, v8
v_add_u32 v8, s24, v8
v_cndmask_b32 v224, v{CSA}, v{CSA+4}, vcc
v_cndmask_b32 v225, v{CSA+1}, v{CSA+5}, vcc
v_cndmask_b32 v226, v{CSA+2}, v{CSA+6}, vcc
v_cndmask_b32 v227, v{CSA+3}, v{CSA+7}, vcc
s_mov_b32 exec_lo, 0x30003
s_mov_b32 exec_hi, 0x30003
global_store_dwordx4 v8, v[224:227], s[48:49] sc1
s_mov_b64 exec, -1
s_branch {name}_csr
{name}_finb:
s_barrier
{name}_fin:
v_rcp_f32 v8, v{L}
s_lshl_b32 s24, s10, 1
s_add_u32 s24, s24, s11
s_lshl_b32 s24, s24, 16
s_lshl_b32 s25, s9, 10
s_add_u32 s24, s24, s25
v_bfe_u32 v9, v0, 4, 1
v_lshlrev_b32 v9, 15, v9
v_and_b32 v10, 15, v0
v_lshl_add_u32 v9, v10, 4, v9
v_lshrrev_b32 v10, 5, v0
v_lshl_add_u32 v9, v10, 8, v9""")
    for i in range(8): a(f"v_pk_mul_f32 {vr(O+2*i,2)}, {vr(O+2*i,2)}, v[8:9] op_sel_hi:[1,0]")
    for i in range(8): a(cv(P+i,O+2*i))
    a(f"""buffer_store_dwordx4 {vr(P,4)}, v9, s[16:19], s24 offen
buffer_store_dwordx4 {vr(P+4,4)}, v9, s[16:19], s24 offen offset:512
v_lshlrev_b32 v240, 4, v0
s_mov_b32 s24, {FLW}
buffer_load_dwordx4 v[244:247], v240, s[36:39], s24 offen""")
    stamp(a,4)
    a(f"""s_mov_b64 exec, -1
s_lshr_b32 s24, s10, 2
s_lshl_b32 s24, s24, 12
s_lshl_b32 s25, s9, 7
s_add_u32 s24, s24, s25
s_add_u32 s42, s24, {FL2}""")
    stamp_out(a,2,5)
    finish(a)
    return a.txt()
```

```python
import sys; sys.path.insert(0,'gen')
from common import *
from gemm import gemm
from other import ln1, attn, wo
k0=ln1('ln1_kernel')
a=A()
a(f"""s_cmp_ge_u32 s2, 256
s_cbranch_scc0 main_go
s_endpgm
main_go:
s_load_dwordx2 s[4:5], s[0:1], {KA_WS}
s_load_dwordx2 s[88:89], s[0:1], {KA_X}
s_load_dwordx2 s[90:91], s[0:1], {KA_WO}
s_load_dwordx8 s[92:99], s[0:1], {KA_W1}
s_load_dwordx2 s[100:101], s[0:1], {KA_OUT}
v_lshrrev_b32 v1, 6, v0
v_and_b32 v0, 63, v0
s_mov_b32 s42, 0
v_readfirstlane_b32 s62, v1
s_waitcnt lgkmcnt(0)""")
body=a.txt()+gemm('qkv','qkv','attn')+attn('attn')+wo('wo')+gemm('ffn1','ffn1','ffn2')+gemm('ffn2','ffn2',None)+'main_end:\n'
k1=dict(name='main_kernel',text=khead('main_kernel')+body,desc=kdesc('main_kernel',256,102),grid=256,block=512,lds=163840)
ks=[k0,k1]
out="; pre-LN transformer block: launch 1 = LN1 + Wqkv re-tile + flag reset; launch 2 = QKV | attention | Wo+res | LN2-folded FFN1+GELU | FFN2+res (flag hand-offs)\n"
for k in ks: out+=f"; @launch kernel={k['name']} grid=({k['grid']},1,1) block=({k['block']},1,1) lds={k['lds']}\n"
out+='.amdgcn_target "amdgcn-amd-amdhsa--gfx950"\n.text\n'+''.join(k['text'] for k in ks)+'.section .rodata,"a"\n'+''.join(k['desc'] for k in ks)
p=sys.argv[1] if len(sys.argv)>1 else 'sequential_preLN__softmax_full_mha__dense_activation_gelu__prompt.s'
open(p,'w').write(out)
```

```python
S=2048; D=1024; F=3584; H=32; DH=32
MB=1<<20
WS_XN=0*MB; WS_Q=4*MB; WS_KV=8*MB; WS_O=16*MB; WS_H=20*MB; WS_G=24*MB
WS_ST=40*MB
WS_WQ=48*MB; WS_WO=54*MB; WS_W1=56*MB; WS_W2=64*MB
WS_CS=41*MB
KA_X,KA_WQKV,KA_WO,KA_BX,KA_W1,KA_B1,KA_W2,KA_B2,KA_OUT,KA_DBG,KA_WS=[8*i for i in range(11)]

class A:
    def __init__(s): s.l=[]
    def __call__(s,t):
        for x in t.strip('\n').split('\n'):
            x=x.strip()
            if not x: continue
            s.l.append(x if x.endswith(':') else '  '+x)
    def ext(s,ls):
        for x in ls: s(x)
    def txt(s): return '\n'.join(s.l)+'\n'

def vr(b,n=1): return f"v{b}" if n==1 else f"v[{b}:{b+n-1}]"
def sr(b,n=1): return f"s{b}" if n==1 else f"s[{b}:{b+n-1}]"
def mf16(d,a,b,c=None):
    c=vr(d,4) if c is None else c
    return f"v_mfma_f32_16x16x32_bf16 {vr(d,4)}, {vr(a,4)}, {vr(b,4)}, {c}"
def mf32(d,a,b,c=None):
    c=vr(d,16) if c is None else c
    return f"v_mfma_f32_32x32x16_bf16 {vr(d,16)}, {vr(a,4)}, {vr(b,4)}, {c}"
def srd(a,dst,base,off,size):
    if off:
        a(f"s_add_u32 s{dst}, s{base}, {hex(off)}\ns_addc_u32 s{dst+1}, s{base+1}, 0")
    else:
        a(f"s_mov_b32 s{dst}, s{base}\ns_mov_b32 s{dst+1}, s{base+1}")
    a(f"s_mov_b32 s{dst+2}, {hex(size)}\ns_mov_b32 s{dst+3}, 0x20000")
def interleave(mains, fills, start=0, per=1):
    out=[]; j=0
    for i,m in enumerate(mains):
        out.append(m)
        if i>=start:
            out+=fills[j:j+per]; j+=per
    return out+fills[j:]
def khead(name):
    return f".globl {name}\n.p2align 8\n.type {name},@function\n{name}:\n"
def kdesc(name,vg,sg=96):
    acc=(vg+3)//4*4
    return f""".p2align 6
.amdhsa_kernel {name}
  .amdhsa_next_free_vgpr {vg}
  .amdhsa_next_free_sgpr {sg}
  .amdhsa_accum_offset {acc}
  .amdhsa_group_segment_fixed_size 0
  .amdhsa_kernarg_size 88
  .amdhsa_user_sgpr_count 2
  .amdhsa_user_sgpr_kernarg_segment_ptr 1
  .amdhsa_system_sgpr_workgroup_id_x 1
.end_amdhsa_kernel
"""
import os
STAMP=int(os.environ.get('STAMP','0'))
WS_TS=44*MB
def stamp(a,i):
    if STAMP: a(f"s_memtime s[{64+2*i}:{65+2*i}]" if i>=0 else "s_memrealtime s[80:81]")
def stamp_out(a,kid,n,wsreg=4,wave='s8'):
    if not STAMP: return
    a("s_waitcnt vmcnt(0)"); stamp(a,n); a("s_memrealtime s[82:83]\ns_waitcnt lgkmcnt(0)")
    a(f"s_mov_b64 exec, 1\ns_lshl_b32 s84, s2, 3\ns_add_u32 s84, s84, {wave}\ns_lshl_b32 s84, s84, 6\ns_add_u32 s84, s84, {WS_TS+kid*(1<<18)}\nv_mov_b32 v250, s84")
    for i in range(n+1): a(f"v_mov_b32 v251, s{64+2*i}\nglobal_store_dword v250, v251, s[{wsreg}:{wsreg+1}] offset:{4*i}")
    a(f"v_mov_b32 v251, s80\nglobal_store_dword v250, v251, s[{wsreg}:{wsreg+1}] offset:56\nv_mov_b32 v251, s82\nglobal_store_dword v250, v251, s[{wsreg}:{wsreg+1}] offset:60\ns_mov_b64 exec, -1")
SC=os.environ.get('SC','sc1')

def wlane(a,dst,ldw_s,perm,t):
    a(f"""v_lshrrev_b32 v{t}, 4, v0
v_bfe_u32 v{t+1}, v0, 2, 2
v_and_b32 v{t+2}, 1, v{t}
v_and_b32 v{t+3}, 3, v0
v_lshlrev_b32 v{t+4}, 1, v{t+2}
v_xor_b32 v{t+3}, v{t+3}, v{t+4}""")
    if perm=='id':  a(f"v_lshl_add_u32 v{dst}, v{t}, 2, v{t+1}")
    if perm=='nat': a(f"v_lshl_add_u32 v{dst}, v{t}, 3, v{t+1}")
    if perm=='att': a(f"v_lshrrev_b32 v{t+4}, 1, v{t}\nv_lshlrev_b32 v{t+4}, 4, v{t+4}\nv_lshl_add_u32 v{dst}, v{t+2}, 2, v{t+1}\nv_add_u32 v{dst}, v{dst}, v{t+4}")
    a(f"v_mul_lo_u32 v{dst}, v{dst}, {ldw_s}\nv_lshl_add_u32 v{dst}, v{t+3}, 4, v{dst}")
BMUL={'id':16,'nat':4,'att':8}
def trlane(a,dst,base_s,t):
    a(f"""v_lshrrev_b32 v{dst}, 2, v0
v_lshlrev_b32 v{dst}, 6, v{dst}
v_and_b32 v{t}, 3, v0
v_lshl_add_u32 v{dst}, v{t}, 3, v{dst}
v_bfe_u32 v{t}, v0, 4, 1
v_lshl_add_u32 v{dst}, v{t}, 5, v{dst}
v_add_u32 v{dst}, {base_s}, v{dst}
v_xor_b32 v{dst+1}, 32, v{dst}""")
def trreads(dst,adr,off=0):
    return [f"ds_read_b64_tr_b16 {vr(dst+4*h+2*b,2)}, v{adr+h} offset:{off+b*1024}" for h in range(2) for b in range(2)]
AV=int(os.environ.get('AV','1')); PRIO=int(os.environ.get('PRIO','0')); NORT=int(os.environ.get('NORT','0'))

WS_FL=42*MB; FL1=0; FL2=0x8000; FL3=0x10000; FL4=0x18000; FLW=0x20000; FL_SZ=0x28000
P_X,P_WO,P_W1,P_B1,P_W2,P_B2,P_OUT=88,90,92,94,96,98,100
SLP=int(os.environ.get('SLP','2'))
_uid=[0]
def poll(a,soff,cnt,t):
    _uid[0]+=1; L=f"poll{_uid[0]}"
    nld=max(cnt//64,1)
    a(f"v_and_b32 v{t}, {min(cnt,64)-1}, v0\nv_lshlrev_b32 v{t}, 7, v{t}")
    for i in range(1,nld): a(f"v_add_u32 v{t+i}, {i*8192}, v{t}")
    a(f"s_mov_b32 s63, 0x40000\n{L}:")
    for i in range(nld): a(f"buffer_load_dword v{t+4+i}, v{t+i}, s[36:39], s{soff} offen sc1")
    a("s_sub_u32 s63, s63, 1\ns_waitcnt vmcnt(0)")
    for i in range(1,nld): a(f"v_and_b32 v{t+4}, v{t+4}, v{t+4+i}")
    a(f"""v_cmp_eq_u32 vcc, 0, v{t+4}
s_cbranch_scc1 {L}x
s_cbranch_vccz {L}x
s_sleep {SLP}
s_branch {L}
{L}x:""")
def pollw(a,t):
    a(f"""s_mov_b32 s63, 0x40000
s_mov_b32 s24, {FLW}
pollw:
s_sub_u32 s63, s63, 1
s_waitcnt vmcnt(0)
v_and_b32 v{t+4}, v{t+4}, v{t+5}
v_and_b32 v{t+6}, v{t+6}, v{t+7}
v_and_b32 v{t+4}, v{t+4}, v{t+6}
v_cmp_eq_u32 vcc, 0, v{t+4}
s_cbranch_scc1 pollwx
s_cbranch_vccz pollwx
s_sleep 4
buffer_load_dwordx4 {vr(t+4,4)}, v{t}, s[36:39], s24 offen sc1
s_branch pollw
pollwx:""")
def setflag(a,soff,t):
    a(f"v_mov_b32 v{t}, 0\nv_mov_b32 v{t+1}, 1\ns_mov_b64 exec, 1\nbuffer_store_dword v{t+1}, v{t}, s[36:39], s{soff} offen\ns_mov_b64 exec, -1")
def handoff(a,soff,cnt,t,mid=None):
    _uid[0]+=1; L=f"ho{_uid[0]}"
    srd(a,36,4,WS_FL,FL_SZ)
    a(f"s_barrier\ns_cmp_eq_u32 s62, 4\ns_cbranch_scc0 {L}a")
    setflag(a,42,t)
    a(f"{L}a:\ns_cmp_eq_u32 s62, 7\ns_cbranch_scc0 {L}")
    poll(a,soff,cnt,t)
    if mid:
        a("s_barrier"); a.ext(mid); a(f"s_branch {L}b\n{L}:"); a.ext(mid); a(f"s_barrier\n{L}b:")
    else: a(f"{L}:\ns_barrier")
def finish(a):
    o=[]
    for x in a.l:
        y=x.strip()
        if y.startswith('buffer_store'): x+=' sc1'
        elif y.startswith('buffer_load') and ' nt' not in y and ' sc1' not in y:
            x=x.replace(' lds',' sc1 lds') if y.endswith(' lds') else x+' sc1'
        o.append(x)
    a.l=o
```

```python
from common import *
import struct
def f2u(x): return hex(struct.unpack('<I',struct.pack('<f',x))[0])

def gemm(name, kind, nxt):
    cfg=dict(
      qkv =dict(BN=192,WM=2,TB=4,NF=6,KP=1,NS=3,K=1024,ldw=6144,wt=WS_WQ,act=WS_XN,perm='nat',xr=8),
      wo  =dict(BN=64, WM=4,TB=2,NF=4,KP=2,NS=3,K=1024,ldw=2048,wt=WS_WO, act=WS_O, perm='att',xr=4),
      ffn1=dict(BN=224,WM=2,TB=4,NF=7,KP=1,NS=3,K=1024,ldw=7168,wt=WS_W1, act=WS_H, perm='id', xr=8),
      ffn2=dict(BN=64, WM=4,TB=2,NF=4,KP=2,NS=3,K=3584,ldw=2048,wt=WS_W2, act=WS_G, perm='id', xr=4),
    )[kind]
    for kv in os.environ.get('CFG_'+kind,'').split():
        k_,v_=kv.split('='); cfg[k_]=int(v_)
    BN,WM,TB,NF,KP,NS,K,ldw=[cfg[k] for k in 'BN WM TB NF KP NS K ldw'.split()]
    KSS=2*KP
    KS=K//32; nst=KS//KSS
    CB=BN//32
    ACT_B=8*KSS*1024
    W_B=KSS*CB*2048
    STG=ACT_B+W_B
    lds=STG*NS
    a=A(); KID={'qkv':1,'wo':3,'ffn1':4,'ffn2':5}[kind]
    a(f'{name}:')
    stamp(a,-1); stamp(a,0)
    xr=cfg['xr']; lx={8:3,4:2}[xr]; nxr=16//xr; lnx={2:1,4:2}[nxr]; xc=32//xr
    a(f"""s_and_b32 s24, s2, 7
s_mov_b32 s8, s62
s_lshr_b32 s25, s2, 3
s_and_b32 s26, s24, {nxr-1}
s_lshl_b32 s26, s26, {lx}
s_and_b32 s9, s25, {xr-1}
s_add_u32 s9, s9, s26
s_lshr_b32 s26, s24, {lnx}
s_mul_i32 s26, s26, {xc}
s_lshr_b32 s10, s25, {lx}
s_add_u32 s10, s10, s26
s_cmp_lt_u32 s8, 4
s_cbranch_scc1 {name}_comp""")
    nA=8*KSS//4; nW=KSS*CB*2//4;
    assert (KSS*CB*2)%4==0 or True
    totW=KSS*CB*2; assert totW%4==0, totW
    n=nA+nW
    a("s_sub_u32 s8, s8, 4")
    a(f"""s_lshl_b32 s24, s9, 3
s_lshl_b32 s25, s8, 1
s_add_u32 s24, s24, s25
s_mul_i32 s24, s24, {KS*1024}
v_lshl_add_u32 v2, v0, 4, s24
v_add_u32 v3, {KS*1024}, v2""")
    a(f"s_mul_i32 s21, s10, {KS*CB*2048}\ns_mov_b32 s20, 0\ns_mul_i32 s24, s8, {nW*1024}\nv_lshl_add_u32 v4, v0, 4, s24\nv_add_u32 v5, 4096, v4")
    a(f"s_mul_i32 s44, s8, {2*KSS*1024}\ns_mul_i32 s45, s8, {nW*1024}\ns_add_u32 s45, s45, {ACT_B}")
    srd(a,12,4,cfg['act'],128*KS*1024)
    srd(a,16,4,cfg['wt'],K*ldw)
    def dmas(sa,sw,oa,ow):
        ad=[]; wd=[]
        for i in range(2):
            for ks in range(KSS):
                ad.append((f"s_add_u32 m0, {sa}, {oa+i*KSS*1024}", f"buffer_load_dwordx4 v{2+i}, s[12:15], s20 offen offset:{ks*1024} lds"))
        for j in range(nW):
            wd.append((f"s_add_u32 m0, {sw}, {ow+(j//4)*4096}", f"buffer_load_dwordx4 v{4+j//4}, s[16:19], s21 offen offset:{(j%4)*1024} lds"))
        def fl(z):
            r=[]; last=None
            for m,l in z:
                r.append((m+"\ns_nop 0\n" if m!=last else "")+l); last=m
            return r
        return fl(ad)+[f"s_add_u32 s20, s20, {KSS*1024}"], fl(wd)+[f"s_add_u32 s21, s21, {W_B}"]
    if kind=='wo':
        pollw(a,240)
    if kind=='qkv':
        for st in range(2):
            ad,wd=dmas('s44','s45',st*STG,st*STG); a.ext(wd+ad)
        a(f"s_waitcnt vmcnt({n})")
    else:
        wpre=dmas('s44','s45',0,0)[1]+dmas('s44','s45',STG,STG)[1]
        a(f"s_lshl_b32 s24, s9, 11\ns_add_u32 s24, s24, {FL3 if kind=='ffn1' else FL4}")
        if kind=='ffn1':
            a("s_waitcnt vmcnt(0)"); handoff(a,24,16,8,wpre)
        else:
            a.ext(wpre); handoff(a,24,16,8)
        for st in range(2): a.ext(dmas('s44','s45',st*STG,st*STG)[0])
        a(f"s_waitcnt vmcnt({nA})")
    a(f"s_barrier\ns_mov_b32 s22, {2*STG}\ns_mov_b32 s23, 2\n{name}_ld:\ns_add_u32 s46, s22, s44\ns_add_u32 s47, s22, s45")
    ad,wd=dmas('s46','s47',0,0); a.ext(wd+ad)
    a(f"""s_add_u32 s22, s22, {STG}
s_cmp_eq_u32 s22, {lds}
s_cselect_b32 s22, 0, s22
s_add_u32 s23, s23, 1
s_cmp_lt_u32 s23, {NS}
s_cbranch_scc1 {name}_ld
s_waitcnt vmcnt({(NS-2)*n})
s_barrier
s_cmp_lt_u32 s23, {nst}
s_cbranch_scc1 {name}_ld""")
    PAR=163840-3072
    if kind=='ffn1':
        srd(a,28,4,WS_ST,16*S*8); srd(a,32,P_B1,0,F*2); srd(a,36,4,WS_CS,8*F*4)
        a(f"""s_lshl_b32 s24, s9, 10
s_lshl_b32 s25, s8, 8
s_add_u32 s24, s24, s25
v_and_b32 v6, 31, v0
v_lshrrev_b32 v7, 5, v0
v_lshlrev_b32 v7, 17, v7
v_lshl_add_u32 v7, v6, 3, v7""")
        for i in range(8): a(f"buffer_load_dwordx2 {vr(16+2*i,2)}, v7, s[28:31], s24 offen\ns_add_u32 s24, s24, {S*8}")
        a(f"""s_mul_i32 s24, s10, 224
s_lshl_b32 s25, s8, 6
s_add_u32 s24, s24, s25
v_add_u32 v8, s24, v0
v_lshlrev_b32 v9, 1, v8
v_lshlrev_b32 v8, 2, v8
buffer_load_ushort v12, v9, s[32:35], 0 offen
s_mov_b32 s24, 0""")
        for i in range(8): a(f"buffer_load_dword v{32+i}, v8, s[36:39], s24 offen\ns_add_u32 s24, s24, {F*4}")
    for b in range(nst-NS+2, nst+1):
        rem=max(nst-1-b,0)
        ex=17 if (kind=='ffn1' and b<nst) else 0
        a(f"s_waitcnt vmcnt({rem*n+ex})")
        if kind=='ffn1' and b==nst:
            for i in range(1,8): a(f"v_pk_add_f32 v[16:17], v[16:17], {vr(16+2*i,2)}\nv_add_f32 v32, v32, v{32+i}")
            a(f"""v_mov_b32 v18, v16
v_mov_b32 v19, v17
s_nop 1
v_permlane32_swap_b32 v16, v18
v_permlane32_swap_b32 v17, v19
s_mov_b32 s24, {f2u(1.0/D)}
s_mov_b32 s25, s24
v_pk_add_f32 v[16:17], v[16:17], v[18:19]
v_pk_mul_f32 v[16:17], v[16:17], s[24:25]
v_fma_f32 v17, -v16, v16, v17
v_max_f32 v17, 0, v17
v_add_f32 v17, {f2u(1e-5)}, v17
v_rsq_f32 v18, v17
s_lshl_b32 s24, s8, 8
s_add_u32 s24, s24, {PAR}
v_mul_f32 v19, v16, v18
v_sub_f32 v19, 0, v19
v_lshl_add_u32 v6, v6, 3, s24
ds_write_b64 v6, v[18:19]
v_lshlrev_b32 v12, 16, v12
v_lshl_add_u32 v6, v0, 2, s24
ds_write_b32 v6, v12 offset:1024
ds_write_b32 v6, v32 offset:2048
s_waitcnt lgkmcnt(0)""")
        a("s_barrier")
    if nxt:
        hi,lo={'qkv':('s10','s9'),'wo':('s9','s10'),'ffn1':('s9','s10')}[kind]
        a(f"s_lshl_b32 s24, {hi}, 11\ns_lshl_b32 s25, {lo}, 7\ns_add_u32 s24, s24, s25\ns_add_u32 s42, s24, {dict(qkv=FL1,wo=FL3,ffn1=FL4)[kind]}")
    if nxt: codepf(a,28,8,252)
    a(f"s_branch {nxt}" if nxt else "s_endpgm")
    a(f"{name}_comp:")
    if kind!='qkv': a("s_waitcnt vmcnt(0)\ns_barrier")
    if kind!='ffn2': codepf(a,28,8,252)
    NACC=TB*NF*4; FR=KP*(TB+NF)*4
    ACC=16; F0=ACC+NACC; F1=F0+FR; VTOP=F1+FR
    acc=lambda tb,f: ACC+(tb*NF+f)*4
    fa=lambda Fb,kp,tb: Fb+kp*(TB+NF)*4+tb*4
    fw=lambda Fb,kp,f: Fb+kp*(TB+NF)*4+(TB+f)*4
    if WM==2: a("s_lshr_b32 s11, s8, 1\ns_and_b32 s3, s8, 1")
    else: a("s_mov_b32 s11, s8\ns_mov_b32 s3, 0")
    a(f"""v_and_b32 v1, 15, v0
v_lshrrev_b32 v2, 4, v0
s_mul_i32 s24, s11, {TB*KSS*1024}
v_lshl_add_u32 v3, v0, 4, s24
s_mul_i32 s24, s3, {NF*1024}
s_add_u32 s24, s24, {ACT_B}
v_lshl_add_u32 v4, v0, 4, s24
v_mov_b32 v6, v3
v_mov_b32 v7, v4""")
    def reads(Fb,ph):
        r=[]
        for kp in range(KP):
            ks=ph*KP+kp
            ra=[f"ds_read_b128 {vr(fa(Fb,kp,tb),4)}, v6 offset:{(tb*KSS+ks)*1024}" for tb in range(TB)]
            rw=[f"ds_read_b128 {vr(fw(Fb,kp,f),4)}, v7 offset:{(ks*CB*2+f)*1024}" for f in range(NF)]
            r+=rw[:1]+ra+rw[1:]
        return r
    def mfmas(Fb):
        r=[]
        for kp in range(KP):
            for f in range(NF):
                for tb in range(TB):
                    if kind=='qkv' and f>=4: r.append(mf16(acc(tb,f),fa(Fb,kp,tb),fw(Fb,kp,f)))
                    else: r.append(mf16(acc(tb,f),fw(Fb,kp,f),fa(Fb,kp,tb)))
        return r
    a(f"s_lshl_b32 s27, s9, 3\ns_mul_i32 s24, s11, {TB}\ns_add_u32 s27, s27, s24")
    T=VTOP
    for i in range(NACC): a(f"v_mov_b32 v{ACC+i}, 0")
    post=A(); fin=A()
    if kind=='wo':
        VTOP+=TB*NF*2
        srd(a,28,P_X,0,S*D*2)
        a(f"s_lshl_b32 s24, s27, 15\ns_lshl_b32 s25, s10, 7\ns_add_u32 s24, s24, s25\nv_lshlrev_b32 v9, 11, v1\nv_lshl_add_u32 v9, v2, 3, v9\ns_add_u32 s25, s24, 32768")
        for tb in range(TB):
            for f in range(NF):
                post(f"buffer_load_dwordx2 {vr(T+(tb*NF+f)*2,2)}, v9, s[28:31], s{24+tb} offen offset:{f*32}")
        for i in range(TB*NF*2):
            fin(f"v_lshlrev_b32 v12, 16, v{T+i}\nv_and_b32 v13, 0xffff0000, v{T+i}\nv_pk_add_f32 {vr(ACC+2*i,2)}, {vr(ACC+2*i,2)}, v[12:13]")
    if kind=='ffn2':
        VTOP+=TB*NF*2+NF*2
        srd(a,28,4,WS_H,4*MB); srd(a,32,P_B2,0,D*2); srd(a,36,P_OUT,0,S*D*2)
        a(f"s_lshl_b32 s24, s27, 15\ns_lshl_b32 s25, s10, 11\ns_add_u32 s24, s24, s25\ns_add_u32 s25, s24, 32768\nv_lshlrev_b32 v9, 4, v0\ns_lshl_b32 s26, s10, 7\nv_lshlrev_b32 v10, 3, v2")
        for tb in range(TB):
            for fp in range(NF//2):
                post(f"buffer_load_dwordx4 {vr(T+(tb*NF+2*fp)*2,4)}, v9, s[28:31], s{24+tb} offen offset:{fp*1024}")
        B=T+TB*NF*2
        for f in range(NF): post(f"buffer_load_dwordx2 {vr(B+2*f,2)}, v10, s[32:35], s26 offen offset:{f*32}")
        for i in range(NF*2):
            fin(f"v_lshlrev_b32 v12, 16, v{B+i}\nv_and_b32 v13, 0xffff0000, v{B+i}")
            for tb in range(TB): fin(f"v_pk_add_f32 {vr(ACC+tb*NF*4+2*i,2)}, {vr(ACC+tb*NF*4+2*i,2)}, v[12:13]")
        for i in range(TB*NF*2):
            fin(f"v_lshlrev_b32 v12, 16, v{T+i}\nv_and_b32 v13, 0xffff0000, v{T+i}\nv_pk_add_f32 {vr(ACC+2*i,2)}, {vr(ACC+2*i,2)}, v[12:13]")
    stamp(a,1)
    if kind!='qkv': a("s_barrier")
    a(f"s_mov_b32 s22, 0\ns_mov_b32 s23, {nst}\ns_barrier")
    stamp(a,2)
    a.ext(reads(F0,0)); a.ext(post.l)
    a(f".p2align 5\n{name}_loop:")
    a(f"s_add_u32 s22, s22, {STG}\ns_cmp_eq_u32 s22, {lds}\ns_cselect_b32 s22, 0, s22\ns_sub_u32 s23, s23, 1\ns_waitcnt lgkmcnt(0)")
    a.ext(interleave(mfmas(F0),reads(F1,1),per=1))
    a("v_add_u32 v6, s22, v3\nv_add_u32 v7, s22, v4\ns_cmp_lg_u32 s23, 0\ns_waitcnt lgkmcnt(0)\ns_barrier")
    a.ext(interleave(mfmas(F1),reads(F0,0),per=1))
    a(f"s_cbranch_scc1 {name}_loop")
    stamp(a,3)
    a("s_waitcnt vmcnt(0) lgkmcnt(0)\ns_nop 7"); a.ext(fin.l)
    P=F0
    def pack(dst,s0,s1):
        return [f"v_cvt_pk_bf16_f32 v{dst}, v{s0}, v{s0+1}",f"v_cvt_pk_bf16_f32 v{dst+1}, v{s0+2}, v{s0+3}",
                f"v_cvt_pk_bf16_f32 v{dst+2}, v{s1}, v{s1+1}",f"v_cvt_pk_bf16_f32 v{dst+3}, v{s1+2}, v{s1+3}"]
    if kind=='qkv':
        srd(a,28,4,WS_Q,4*MB); srd(a,32,4,WS_KV,8*MB)
        a(f"""s_lshl_b32 s24, s10, 1
s_add_u32 s24, s24, s3
s_lshl_b32 s24, s24, 6
s_lshr_b32 s25, s27, 1
s_add_u32 s24, s24, s25
s_lshl_b32 s25, s24, 12
s_lshl_b32 s24, s24, 11
s_add_u32 s26, s25, 4096
v_lshlrev_b32 v9, 9, v2
v_lshl_add_u32 v10, v1, 4, v9
v_lshrrev_b32 v11, 3, v1
v_lshlrev_b32 v11, 8, v11
v_and_b32 v12, 7, v1
v_lshl_add_u32 v11, v12, 4, v11
v_add_u32 v11, v11, v9
s_mov_b32 s44, {f2u(DH**-0.5*1.4426950408889634)}
s_mov_b32 s45, s44""")
        for tb in range(TB):
            a.ext(pack(P+tb*4,acc(tb,2),acc(tb,3)))
            a(f"buffer_store_dwordx4 {vr(P+tb*4,4)}, v11, s[32:35], s{25+(tb>>1)} offen offset:{(tb&1)*128}")
        for kb in range(2):
            for e in range(2):
                d=P+16+(kb*2+e)*4
                a.ext(pack(d,acc(2*kb,4+e),acc(2*kb+1,4+e)))
                a(f"buffer_store_dwordx4 {vr(d,4)}, v10, s[32:35], s{25+kb} offen offset:{2048+e*256}")
        for tb in range(TB):
            for i in range(4): a(f"v_pk_mul_f32 {vr(acc(tb,0)+2*i,2)}, {vr(acc(tb,0)+2*i,2)}, s[44:45]")
            d=P+32+tb*4
            a.ext(pack(d,acc(tb,0),acc(tb,1)))
            a(f"buffer_store_dwordx4 {vr(d,4)}, v10, s[28:31], s24 offen offset:{(tb>>1)*2048+(tb&1)*256}")
    if kind=='wo':
        srd(a,28,4,WS_H,4*MB); srd(a,32,4,WS_ST,16*S*8)
        a(f"s_lshl_b32 s24, s27, 15\ns_lshl_b32 s25, s10, 11\ns_add_u32 s24, s24, s25\ns_add_u32 s25, s24, 32768\nv_lshlrev_b32 v9, 4, v0")
        for tb in range(TB):
            for fp in range(2):
                d=P+(tb*2+fp)*4
                a.ext(pack(d,acc(tb,2*fp),acc(tb,2*fp+1)))
                a(f"buffer_store_dwordx4 {vr(d,4)}, v9, s[28:31], s{24+tb} offen offset:{fp*1024}")
        Q=P+16
        for tb in range(TB):
            a(f"v_mov_b32 v{Q+4*tb}, 0\nv_mov_b32 v{Q+4*tb+1}, 0")
            for i in range(8):
                a(f"""v_lshlrev_b32 v12, 16, v{P+tb*8+i}
v_and_b32 v13, 0xffff0000, v{P+tb*8+i}
v_add_f32 v{Q+4*tb}, v{Q+4*tb}, v12
v_fmac_f32 v{Q+4*tb+1}, v12, v12
v_add_f32 v{Q+4*tb}, v{Q+4*tb}, v13
v_fmac_f32 v{Q+4*tb+1}, v13, v13""")
        for sw in ('16','32'):
            for tb in range(TB):
                t=Q+4*tb; a(f"v_mov_b32 v{t+2}, v{t}\nv_mov_b32 v{t+3}, v{t+1}")
            a("s_nop 1")
            for tb in range(TB):
                t=Q+4*tb; a(f"v_permlane{sw}_swap_b32 v{t}, v{t+2}\nv_permlane{sw}_swap_b32 v{t+1}, v{t+3}")
            a("s_nop 1")
            for tb in range(TB):
                t=Q+4*tb; a(f"v_pk_add_f32 {vr(t,2)}, {vr(t,2)}, {vr(t+2,2)}")
        a(f"""v_cmp_eq_u32 vcc, 1, v2
s_lshl_b32 s24, s27, 7
s_lshl_b32 s25, s10, 14
s_add_u32 s24, s24, s25
v_lshlrev_b32 v9, 3, v0
v_cndmask_b32 v{Q}, v{Q}, v{Q+4}, vcc
v_cndmask_b32 v{Q+1}, v{Q+1}, v{Q+5}, vcc
s_mov_b32 exec_hi, 0
buffer_store_dwordx2 {vr(Q,2)}, v9, s[32:35], s24 offen""")
    if kind=='ffn2':
        a(f"""s_lshl_b32 s24, s27, 15
s_lshl_b32 s25, s10, 7
s_add_u32 s24, s24, s25
s_add_u32 s25, s24, 32768
v_lshlrev_b32 v9, 11, v1
v_and_b32 v10, 1, v2
v_lshl_add_u32 v9, v10, 5, v9
v_lshrrev_b32 v10, 1, v2
v_lshl_add_u32 v9, v10, 4, v9""")
        for tb in range(TB):
            for fp in range(2):
                a.ext(pack(P+(tb*2+fp)*4,acc(tb,2*fp),acc(tb,2*fp+1)))
        a("s_nop 1")
        for tb in range(TB):
            for fp in range(2):
                d=P+(tb*2+fp)*4
                a(f"v_permlane16_swap_b32 v{d}, v{d+2}\nv_permlane16_swap_b32 v{d+1}, v{d+3}")
                a(f"buffer_store_dwordx4 {vr(d,4)}, v9, s[36:39], s{24+tb} offen offset:{fp*64}")
    if kind=='ffn1':
        srd(a,28,4,WS_G,14*MB)
        c0=-2*1.4426950408889634*0.7978845608028654; c1=c0*0.044715
        RS=P+24; BB=RS+8; CS=BB+28; assert CS+28<=VTOP
        a(f"""s_lshl_b32 s24, s11, 9
s_add_u32 s24, s24, {PAR}
v_lshl_add_u32 v9, v1, 3, s24
s_mul_i32 s24, s3, 448
s_add_u32 s24, s24, {PAR}
v_lshl_add_u32 v10, v2, 4, s24""")
        for tb in range(TB): a(f"ds_read_b64 {vr(RS+2*tb,2)}, v9 offset:{tb*128}")
        for f in range(NF): a(f"ds_read_b128 {vr(BB+4*f,4)}, v10 offset:{1024+f*64}\nds_read_b128 {vr(CS+4*f,4)}, v10 offset:{2048+f*64}")
        a(f"""s_mov_b32 s44, {f2u(c1)}
s_mov_b32 s45, s44
v_mov_b32 v12, {f2u(c0)}
v_mov_b32 v13, v12
s_mul_i32 s24, s27, {112*1024}
s_mul_i32 s25, s10, {7*1024}
s_add_u32 s24, s24, s25
s_mul_i32 s25, s3, {4*1024}
s_add_u32 s48, s24, s25
s_lshl_b32 s25, s3, 9
s_add_u32 s52, s24, s25
s_add_u32 s52, s52, {3*1024}
s_add_u32 s54, s52, {2*112*1024}
v_lshlrev_b32 v9, 4, v0
v_and_b32 v10, 1, v2
v_mul_u32_u24 v10, {112*1024}, v10
v_lshl_add_u32 v10, v1, 4, v10
v_lshrrev_b32 v11, 1, v2
v_lshl_add_u32 v10, v11, 8, v10""")
        for tb in range(1,TB): a(f"s_add_u32 s{48+tb}, s48, {tb*112*1024}")
        a("s_waitcnt lgkmcnt(0)")
        def gelu(tb,f,t):
            r=[]; x=acc(tb,f); rs=vr(RS+2*tb,2)
            for e in (0,2): r.append(f"v_pk_fma_f32 {vr(t+e,2)}, {vr(CS+4*f+e,2)}, {rs}, {vr(BB+4*f+e,2)} op_sel:[0,1,0] op_sel_hi:[1,1,1]")
            for e in (0,2): r.append(f"v_pk_fma_f32 {vr(x+e,2)}, {vr(x+e,2)}, {rs}, {vr(t+e,2)} op_sel_hi:[1,0,1]")
            for e in (0,2): r.append(f"v_pk_mul_f32 {vr(t+e,2)}, {vr(x+e,2)}, {vr(x+e,2)}")
            for e in (0,2): r.append(f"v_pk_fma_f32 {vr(t+e,2)}, {vr(t+e,2)}, s[44:45], v[12:13]")
            for e in (0,2): r.append(f"v_pk_mul_f32 {vr(t+e,2)}, {vr(t+e,2)}, {vr(x+e,2)}")
            for e in range(4): r.append(f"v_exp_f32 v{t+e}, v{t+e}")
            for e in (0,2): r.append(f"v_pk_add_f32 {vr(t+e,2)}, {vr(t+e,2)}, 1.0 op_sel_hi:[1,0]")
            for e in range(4): r.append(f"v_rcp_f32 v{t+e}, v{t+e}")
            for e in (0,2): r.append(f"v_pk_mul_f32 {vr(x+e,2)}, {vr(x+e,2)}, {vr(t+e,2)}")
            return r
        for wn in range(2):
            if wn==0: a(f"s_cmp_eq_u32 s3, 1\ns_cbranch_scc1 {name}_ep1")
            else: a(f"{name}_ep1:")
            cnt=0
            fo=6 if wn==0 else 0
            for tb in (0,2):
                for x,y in zip(gelu(tb,fo,P),gelu(tb+1,fo,P+4)): a(x); a(y)
                d=P+8+(cnt%4)*4; cnt+=1
                a.ext(pack(d,acc(tb,fo),acc(tb+1,fo)))
                a(f"s_nop 1\nv_permlane16_swap_b32 v{d}, v{d+2}\nv_permlane16_swap_b32 v{d+1}, v{d+3}\nbuffer_store_dwordx4 {vr(d,4)}, v10, s[28:31], s{52+tb} offen")
            for tb in range(TB):
                for fp in range(3):
                    for x,y in zip(gelu(tb,wn+2*fp,P),gelu(tb,wn+2*fp+1,P+4)): a(x); a(y)
                    d=P+8+(cnt%4)*4; cnt+=1
                    a.ext(pack(d,acc(tb,wn+2*fp),acc(tb,wn+2*fp+1)))
                    a(f"buffer_store_dwordx4 {vr(d,4)}, v9, s[28:31], s{48+tb} offen offset:{fp*1024}")
            if wn==0:
                a(f"s_branch {name}_done")
    a(f"{name}_done:")
    stamp(a,4)
    a("s_mov_b64 exec, -1")
    stamp_out(a,KID,5)
    if not nxt: a("s_endpgm")
    assert VTOP<=250 and lds<=PAR, VTOP
    finish(a)
    return a.txt()
```

```python
from common import *
from gemm import f2u

def xreduce(a, regs, tmp, op="v_add_f32", sws=('16','32')):
    for sw in sws:
        for r,t in zip(regs,tmp): a(f"v_mov_b32 v{t}, v{r}")
        a("s_nop 1")
        for r,t in zip(regs,tmp): a(f"v_permlane{sw}_swap_b32 v{r}, v{t}")
        a("s_nop 1")
        for r,t in zip(regs,tmp): a(f"{op} v{r}, v{r}, v{t}")

def ln1(name):
    a=A()
    X=16; U=32; R=64
    a(f"""s_cmp_ge_u32 s2, 256
s_cbranch_scc1 {name}_end
s_load_dwordx4 s[4:7], s[0:1], {KA_X}
s_load_dwordx2 s[8:9], s[0:1], {KA_WS}
s_load_dwordx2 s[44:45], s[0:1], {KA_WO}""")
    stamp(a,-1); stamp(a,0)
    a(f"""v_lshrrev_b32 v1, 6, v0
v_and_b32 v0, 63, v0
v_and_b32 v2, 7, v0
v_readfirstlane_b32 s10, v1
v_lshrrev_b32 v3, 3, v0
v_lshlrev_b32 v4, 11, v2
v_lshl_add_u32 v4, v3, 4, v4
s_lshl_b32 s20, s2, 14
s_lshl_b32 s21, s10, 9
s_add_u32 s21, s21, s20
s_movk_i32 s30, 6144
s_waitcnt lgkmcnt(0)""")
    srd(a,12,4,0,S*D*2)
    for i in range(4): a(f"buffer_load_dwordx4 {vr(X+4*i,4)}, v4, s[12:15], s21 offen offset:{i*128}")
    srd(a,16,8,WS_FL,FL_SZ)
    a("v_lshlrev_b32 v8, 2, v0\nv_mov_b32 v9, 0\ns_lshl_b32 s22, s2, 10\ns_lshl_b32 s23, s10, 8\ns_add_u32 s22, s22, s23\nbuffer_store_dword v9, v8, s[16:19], s22 offen")
    a(f"""s_lshr_b32 s31, s2, 3
s_and_b32 s32, s2, 7
s_cmp_eq_u32 s10, 3
s_cselect_b32 s24, s44, s6
s_cselect_b32 s25, s45, s7
s_cselect_b32 s26, 2, 6
s_mov_b32 s27, 0x20000
s_cselect_b32 s30, 0x800, s30
s_cselect_b32 s38, 0, s10
s_cselect_b32 s39, 4, 12
s_cselect_b32 s40, {6*MB}, 0
s_cselect_b32 s41, 4, 8
s_cselect_b32 s43, 8, 4
s_mul_i32 s41, s41, s30
s_mul_i32 s43, s43, s30
s_lshl_b32 s46, s30, 4
s_lshl_b32 s26, s26, 20
v_lshrrev_b32 v11, 4, v0
v_and_b32 v12, 15, v0
v_lshlrev_b32 v13, 1, v11
v_xor_b32 v12, v12, v13
v_mul_lo_u32 v10, v11, s30
v_lshl_add_u32 v10, v12, 4, v10
v_xor_b32 v11, 0x80, v10
s_lshl_b32 s38, s38, 11
s_mul_i32 s33, s31, s30
s_lshl_b32 s33, s33, 5
s_lshl_b32 s34, s32, 8
s_add_u32 s33, s33, s34
s_add_u32 s33, s33, s38
s_lshl_b32 s35, s10, 13
s_add_u32 s35, s35, 1024""")
    for d in range(8):
        b,g=d>>2,d&3
        a(f"s_add_u32 m0, s35, {d*1024}\ns_mov_b32 s34, s33")
        if g>>1: a("s_add_u32 s34, s34, s46")
        if g&1: a("s_add_u32 s34, s34, s41")
        if b: a("s_add_u32 s34, s34, s43")
        a(f"buffer_load_dwordx4 v{10+(d&1)}, s[24:27], s34 offen nt lds")
    srd(a,16,8,WS_XN,4*MB); srd(a,48,8,WS_WQ,8*MB)
    a(f"""v_lshrrev_b32 v14, 2, v0
v_and_b32 v15, 7, v14
v_lshlrev_b32 v14, 8, v14
v_lshl_add_u32 v14, v15, 5, v14
v_and_b32 v15, 3, v0
v_lshl_add_u32 v14, v15, 3, v14
v_add_u32 v14, s35, v14
s_lshl_b32 s33, s32, 6
s_add_u32 s33, s33, s31
s_mul_i32 s33, s33, s39
s_lshl_b32 s33, s33, 10
s_add_u32 s33, s33, s40
s_add_u32 s52, s33, s38
s_lshl_b32 s34, s39, 9
s_add_u32 s53, s52, s34
s_lshl_b32 s34, s39, 15
s_add_u32 s54, s52, s34
s_add_u32 s55, s53, s34
s_lshr_b32 s22, s2, 1
s_lshl_b32 s22, s22, 15
s_and_b32 s23, s2, 1
s_lshl_b32 s23, s23, 7
s_add_u32 s22, s22, s23
s_lshl_b32 s23, s10, 13
s_add_u32 s22, s22, s23
s_add_u32 s23, s22, 4096
v_lshlrev_b32 v5, 4, v2
s_lshl_b32 s36, s10, 2
v_add_u32 v6, s36, v5
v_lshl_add_u32 v7, v3, 8, v5
v_mov_b32 v8, 0
v_mov_b32 v9, 0""")
    for i in range(4):
        a(f"s_waitcnt vmcnt({12-i})")
        for j in range(4):
            r=4*i+j
            a(f"v_lshlrev_b32 v{U+2*r}, 16, v{X+r}\nv_and_b32 v{U+2*r+1}, 0xffff0000, v{X+r}\nv_pk_add_f32 v[8:9], v[8:9], {vr(U+2*r,2)}")
    def wgreduce(off):
        a("v_add_f32 v8, v8, v9\ns_nop 1\nv_add_f32_dpp v8, v8, v8 row_ror:8 row_mask:0xf bank_mask:0xf")
        xreduce(a,[8],[9])
        a(f"""ds_write_b32 v6, v8 offset:{off}
s_waitcnt lgkmcnt(0)
s_barrier
ds_read_b128 v[{R}:{R+3}], v5 offset:{off}
s_waitcnt lgkmcnt(0)
v_add_f32 v12, v{R}, v{R+1}
v_add_f32 v13, v{R+2}, v{R+3}
v_add_f32 v12, v12, v13""")
    stamp(a,1)
    wgreduce(0)
    stamp(a,2)
    a(f"v_mul_f32 v10, {f2u(-1.0/D)}, v12\nv_mov_b32 v8, 0\nv_mov_b32 v9, 0")
    for r in range(16): a(f"v_pk_add_f32 {vr(U+2*r,2)}, {vr(U+2*r,2)}, v[10:11] op_sel_hi:[1,0]")
    for r in range(16): a(f"v_pk_fma_f32 v[8:9], {vr(U+2*r,2)}, {vr(U+2*r,2)}, v[8:9]")
    wgreduce(256)
    a(f"v_mov_b32 v13, {f2u(1e-5)}\nv_fmac_f32 v13, {f2u(1.0/D)}, v12\nv_rsq_f32 v10, v13\ns_nop 0")
    for i in range(4):
        for j in range(4):
            r=4*i+j
            a(f"v_pk_mul_f32 {vr(U+2*r,2)}, {vr(U+2*r,2)}, v[10:11] op_sel_hi:[1,0]")
        for j in range(4):
            r=4*i+j
            a(f"v_cvt_pk_bf16_f32 v{X+r}, v{U+2*r}, v{U+2*r+1}")
        a(f"buffer_store_dwordx4 {vr(X+4*i,4)}, v7, s[16:19], s{22+(i>>1)} offen offset:{(i&1)*2048}")
    stamp(a,3)
    a("v_lshlrev_b32 v7, 4, v0\ns_waitcnt vmcnt(4)")
    for f in range(8):
        a(f"v_xor_b32 v15, {f*32}, v14\nds_read_b64_tr_b16 {vr(R+4*f,2)}, v15\nds_read_b64_tr_b16 {vr(R+4*f+2,2)}, v15 offset:4096")
    for f in range(8):
        if f%2==0: a(f"s_waitcnt lgkmcnt({0 if STAMP else 12-4*(f//2)})")
        a(f"buffer_store_dwordx4 {vr(R+4*f,4)}, v7, s[48:51], s{52+f//2} offen offset:{(f%2)*1024}")
    stamp(a,4); stamp_out(a,0,5,8,'s10')
    a(f"{name}_end:\ns_endpgm")
    if SC: a.l=[x+' '+SC if x.strip().startswith('buffer_store') else x for x in a.l]
    return dict(name=name,text=khead(name)+a.txt(),desc=kdesc(name,256 if STAMP else 96,96),grid=256,block=256,lds=1024+4*8192)

def attn(name):
    a=A()
    a(f'{name}:')
    stamp(a,-1); stamp(a,0)
    B=[dict(SA=16,SB=32,O=48,L=64,NM=68,Q=84,P=92),dict(SA=100,SB=116,O=132,L=148,NM=152,Q=168,P=176)]
    Kf=184; Vf=192; ON=200; WT=204; CSA=212; ON1=220; VT=224; STG=0x20000
    a(f"""s_and_b32 s24, s2, 7
s_mov_b32 s8, s62
s_lshr_b32 s25, s2, 3
s_lshl_b32 s9, s24, 2
s_lshr_b32 s26, s25, 3
s_add_u32 s9, s9, s26
s_and_b32 s25, s25, 7
s_and_b32 s3, s8, 3
s_lshr_b32 s11, s8, 2
s_lshl_b32 s10, s25, 2
s_add_u32 s10, s10, s3
v_lshlrev_b32 v2, 4, v0
s_lshl_b32 s44, s8, 12
s_lshl_b32 s45, s11, 14
v_add_u32 v4, s45, v2
s_mov_b32 s40, 0
s_cmp_eq_u32 s8, 0
s_cselect_b32 s41, 1, 0
s_cmp_lt_u32 s2, 112
s_cselect_b32 s43, 2, 0
s_mov_b32 s60, 0
s_mov_b32 s61, 0
s_mov_b32 s15, 0x20000""")
    kvs=f"""s_lshl_b32 s24, s9, 18
s_add_u32 s24, s24, {hex(WS_KV)}
s_add_u32 s12, s4, s24
s_addc_u32 s13, s5, 0
s_mov_b32 s14, 0x40000
s_lshl_b32 s25, s11, 17
s_lshl_b32 s26, s3, 12
s_add_u32 s25, s25, s26
v_add_u32 v3, s25, v2
s_movk_i32 s58, 0x4000"""
    a(kvs)
    srd(a,16,4,WS_Q,4*MB)
    def dma():
        return ["s_add_u32 m0, s22, s44","s_add_u32 s22, s22, 0x8000"]+[f"buffer_load_dwordx4 v3, s[12:15], s20 offen offset:{i*1024} lds" for i in range(4)]+["s_add_u32 s20, s20, 0x4000","s_and_b32 s22, s22, 0x1ffff"]
    a(f"""s_cmp_lt_u32 s2, 112
s_cbranch_scc0 {name}_rt2""")
    srd(a,28,P_W1,0,D*F*2); srd(a,32,4,WS_W1,D*F*2)
    a(f"""s_movk_i32 s56, {F*2}
s_mul_i32 s60, s2, 4682
s_lshr_b32 s60, s60, 16
s_mul_i32 s25, s60, 14
s_sub_u32 s25, s2, s25
s_lshl_b32 s61, s25, 3
s_add_u32 s61, s61, s8
s_mul_i32 s50, s60, {128*F*2}
s_lshl_b32 s24, s61, 6
s_add_u32 s50, s50, s24
s_mov_b32 s51, {32*F*2}
s_mov_b32 s52, {16*F*2}
s_mul_i32 s24, s61, 9363
s_lshr_b32 s24, s24, 16
s_mul_i32 s25, s24, 7
s_sub_u32 s25, s61, s25
s_lshl_b32 s24, s24, 5
s_lshl_b32 s26, s60, 2
s_add_u32 s24, s24, s26
s_mul_i32 s24, s24, 7
s_add_u32 s24, s24, s25
s_lshl_b32 s53, s24, 11
s_movk_i32 s54, {7*2048}
s_movk_i32 s55, {7*2048}""")
    wlane(a,10,'s56','id',11)
    a(f"""s_branch {name}_rt9
{name}_rt2:
s_movk_i32 s56, 2048
s_movk_i32 s51, 64
s_movk_i32 s54, 2048""")
    srd(a,28,P_W2,0,D*F*2); srd(a,32,4,WS_W2,D*F*2)
    a(f"""s_sub_u32 s26, s2, 112
s_mul_i32 s53, s8, {2*112*4096}
s_mov_b32 s55, {112*4096-2048}
s_mul_i32 s24, s26, 9363
s_lshr_b32 s24, s24, 16
s_mul_i32 s25, s24, 7
s_sub_u32 s25, s26, s25
s_cmp_eq_u32 s25, 3
s_cbranch_scc1 {name}_rt2n
s_mov_b32 s52, {16*2048}""")
    wlane(a,10,'s56','id',11)
    a(f"s_branch {name}_rt8\n{name}_rt2n:\ns_movk_i32 s52, {4*2048}")
    wlane(a,10,'s56','nat',11)
    a(f"""{name}_rt8:
s_lshl_b32 s50, s26, 16
s_lshl_b32 s24, s8, 8
s_add_u32 s50, s50, s24
s_lshl_b32 s24, s26, 12
s_add_u32 s53, s53, s24
s_cmp_lt_u32 s2, 224
s_cselect_b32 s50, s50, 0x7f000000
s_cselect_b32 s53, s53, 0x7f000000
{name}_rt9:
s_add_u32 s57, s44, {STG}""")
    trlane(a,12,'s57',11)
    for i in range(8): a(f"v_mov_b32 v{CSA+i}, 0")
    for i in range(4): a(f"v_mov_b32 v{ON1+i}, 0x3f803f80")
    a(f"""s_sub_u32 s53, s53, s54
s_sub_u32 s53, s53, s55
v_add_u32 v11, s57, v2
ds_write_b128 v11, {vr(CSA,4)} offset:2048
ds_write_b128 v11, {vr(CSA,4)} offset:3072
v_xor_b32 v12, 0x800, v12
v_xor_b32 v13, 0x800, v13""")
    if NORT: a("s_mov_b32 s50, 0x7f000000\ns_mov_b32 s53, s50")
    a(f"s_lshr_b32 s24, s9, 1\ns_lshl_b32 s24, s24, 11\ns_add_u32 s24, s24, {FL1}\ns_waitcnt vmcnt(0)"); handoff(a,24,16,16)
    stamp(a,1)
    a(f"""s_lshl_b32 s24, s9, 5
s_add_u32 s24, s24, s10
s_lshl_b32 s24, s24, 12""")
    for i in range(4): a(f"buffer_load_dwordx4 {vr(B[i>>1]['Q']+4*(i&1),4)}, v2, s[16:19], s24 offen offset:{i*1024}")
    a(f"s_mov_b32 s20, 0\ns_mov_b32 s22, 0")
    a.ext(dma())
    a(f"{name}_restart:")
    srd(a,16,4,WS_O,4*MB)
    a(f"""v_lshrrev_b32 v8, 4, v0
v_lshrrev_b32 v5, 2, v0
v_xor_b32 v8, v8, v5
v_and_b32 v8, 1, v8
v_cmp_eq_u32 vcc, 0, v8
v_mov_b32 v5, 0x3f803f80
s_nop 1""")
    for i in range(4): a(f"v_cndmask_b32 v{ON+i}, 0, v5, vcc")
    for b in B:
        for i in range(20): a(f"v_mov_b32 v{b['O']+i}, 0")
        for i in range(4): a(f"v_mov_b32 v{b['P']+4+i}, 0")
    for i in range(4): a(f"v_mov_b32 v{Vf+4+i}, 0")
    a(f"""v_mov_b32 v6, v4
v_add_u32 v7, 0x8000, v4
s_mov_b32 s23, 8
s_mov_b32 s21, 0x8000
s_waitcnt vmcnt(0)
s_barrier
ds_read_b128 {vr(WT,4)}, v2
ds_read_b128 {vr(WT+4,4)}, v2 offset:1024
ds_read_b128 {vr(Kf,4)}, v6
ds_read_b128 {vr(Kf+4,4)}, v6 offset:1024
s_cmp_lg_u32 s40, 0
s_cbranch_scc1 {name}_havemax
s_waitcnt lgkmcnt(2)""")
    for b in B: a(mf32(b['SA'],WT,b['Q'],'0'))
    for b in B: a(mf32(b['SA'],WT+4,b['Q']+4))
    a("s_nop 11")
    for m,b in zip((14,15),B):
        SA=b['SA']; a(f"v_max3_f32 v{m}, v{SA}, v{SA+1}, v{SA+2}")
        for i in range(3,15,2): a(f"v_max3_f32 v{m}, v{SA+i}, v{SA+i+1}, v{m}")
        a(f"v_max_f32 v{m}, v{SA+15}, v{m}")
    xreduce(a,[14,15],[8,9],"v_max_f32",('32',))
    a(f"{name}_havemax:")
    stamp(a,2)
    for m,b in zip((14,15),B):
        for i in range(16): a(f"v_sub_f32 v{b['NM']+i}, 0, v{m}")
    a("s_waitcnt lgkmcnt(0)")
    for i in range(8): a(f"v_mov_b32 v{WT+i}, 0")
    for b in B: a(mf32(b['SA'],Kf,b['Q'],vr(b['NM'],16)))
    for b in B: a(mf32(b['SA'],Kf+4,b['Q']+4))
    a.ext(dma()+dma())
    a(f"""ds_read_b128 {vr(Kf,4)}, v6 offset:4096
ds_read_b128 {vr(Kf+4,4)}, v6 offset:{4096+1024}
ds_read_b128 {vr(Vf,4)}, v6 offset:2048
s_waitcnt lgkmcnt(0)
s_nop 7
.p2align 5
{name}_loop:""")
    def rd(dst,t,off):
        return [f"ds_read_b128 {vr(dst,4)}, v{6 if t<4 else 7} offset:{(t%4)*4096+off}"]
    ex=lambda s,i: f"v_exp_f32 v{s+i}, v{s+i}"
    cv=lambda d,s: f"v_cvt_pk_bf16_f32 v{d}, v{s}, v{s+1}"
    for t in range(4):
        if t==2: a("s_waitcnt vmcnt(8)\ns_barrier")
        X=[[],[],[],[]]; W2=2
        kv=lambda i: [f"buffer_load_dwordx4 v3, s[12:15], s20 offen offset:{i*1024} lds"]
        if t==0: a(f"s_cmp_eq_u32 s23, s43\ns_cbranch_scc1 {name}_cs\n{name}_csr:")
        if t==1: a(f"s_cmp_eq_u32 s23, 3\ns_cbranch_scc1 {name}_sw\n{name}_swr:")
        if t==2: a(f"s_cmp_eq_u32 s23, s41\ns_cbranch_scc1 {name}_wf\n{name}_wfr:")
        if t==2: X[0]=["s_add_u32 m0, s22, s44","s_add_u32 s22, s22, 0x8000","s_and_b32 s22, s22, 0x1ffff"]; X[1]=kv(0); X[3]=kv(1)
        if t==3: X[0]=kv(2); X[1]=trreads(WT,12); W2=6; X[2]=kv(3); X[3]=["s_add_u32 s20, s20, s58","v_xor_b32 v12, 0x800, v12","v_xor_b32 v13, 0x800, v13"]
        if t==0:
            X[0]=["s_sub_u32 s24, s23, 3","s_cmp_lt_u32 s24, 4","s_cselect_b32 s25, s53, 0x7f000000",f"buffer_store_dwordx4 {vr(WT,4)}, v2, s[32:35], s25 offen"]
            X[1]=[mf16(CSA,WT,ON1),"s_add_u32 s53, s53, s54","s_mov_b32 s24, s54"]
            X[2]=["s_mov_b32 s54, s55","s_mov_b32 s55, s24",f"buffer_store_dwordx4 {vr(WT+4,4)}, v2, s[32:35], s25 offen offset:1024"]
            X[3]=[mf16(CSA+4,WT+4,ON1)]
        if t==1:
            X[0]=["s_cmp_gt_u32 s23, 4","s_mov_b32 m0, s57","s_cselect_b32 s25, s50, 0x7f000000","buffer_load_dwordx4 v10, s[28:31], s25 offen nt lds"]
            X[2]=["s_add_u32 m0, s57, 1024","s_add_u32 s25, s25, s52","buffer_load_dwordx4 v10, s[28:31], s25 offen nt lds"]
            X[3]=["s_add_u32 s50, s50, s51","s_xor_b32 s57, s57, 0x800"]
        x=[]
        for b in B:
            C,N=(b['SA'],b['SB']) if t%2==0 else (b['SB'],b['SA'])
            x.append(dict(E=[ex(C,i) for i in range(16)],Cv=[cv(b['P']+i,C+2*i) for i in range(8)],
              qk0=[mf32(N,Kf,b['Q'],vr(b['NM'],16))],qk1=[mf32(N,Kf+4,b['Q']+4)],pv1=[mf32(b['O'],Vf+4,b['P']+4)],pv0=[mf32(b['O'],Vf,b['P'])],
              l1=[mf16(b['L'],ON,b['P']+4)],l0=[mf16(b['L'],ON,b['P'])]))
        u,v=x; W=["s_waitcnt lgkmcnt(2)"]
        tail=["s_add_u32 s21, s21, 0x8000","s_and_b32 s21, s21, 0x1ffff","s_sub_u32 s23, s23, 1","s_cmp_lg_u32 s23, 0","v_mov_b32 v6, v7","v_add_u32 v7, s21, v4"] if t==3 else []
        a(f's_setprio {3-((t+2)%4)}')
        a.ext(W+u['qk0']+u['E'][0:4]+v['qk0']+rd(Kf,t+2,0)+u['E'][4:8]+u['pv1']+X[0]+v['E'][0:4]+v['pv1']+rd(Vf+4,t,3072)+v['E'][4:8]+X[1]+u['l1']+u['Cv'][0:4]+v['l1']+v['Cv'][0:4])
        a.ext([f"s_waitcnt lgkmcnt({W2})"]+u['qk1']+u['E'][8:12]+v['qk1']+rd(Kf+4,t+2,1024)+u['E'][12:16]+u['pv0']+X[2]+v['E'][8:12]+v['pv0']+rd(Vf,t+1,2048)+v['E'][12:16]+X[3]+u['l0']+u['Cv'][4:8]+v['l0']+tail+v['Cv'][4:8])
    a(f"s_cbranch_scc1 {name}_loop\ns_setprio 0\ns_waitcnt lgkmcnt(0)")
    for b in B: a(mf32(b['O'],Vf+4,b['P']+4)); a(mf16(b['L'],ON,b['P']+4))
    stamp(a,3)
    O=B[0]['O']; L=B[0]['L']; P=B[0]['P']; O1=B[1]['O']; X=B[0]['SA']
    a(f"""s_mul_i32 s24, s8, 5120
s_xor_b32 s25, s8, 4
s_mul_i32 s25, s25, 5120
s_add_u32 s24, s24, 0x18000
s_add_u32 s25, s25, 0x18000
v_add_u32 v8, s24, v2
v_add_u32 v9, s25, v2
s_waitcnt vmcnt(4)
s_barrier
s_nop 7
s_cmp_eq_u32 s11, 0
s_cbranch_scc1 {name}_m0""")
    for i in range(20): a(f"v_swap_b32 v{O+i}, v{O1+i}")
    a(f"{name}_m0:")
    for i in range(5): a(f"ds_write_b128 v8, {vr(O1+4*i,4)} offset:{i*1024}")
    a("s_waitcnt lgkmcnt(0)\ns_barrier")
    for i in range(5): a(f"ds_read_b128 {vr(X+4*i,4)}, v9 offset:{i*1024}")
    a("s_waitcnt lgkmcnt(0)")
    for i in range(9): a(f"v_pk_add_f32 {vr(O+2*i,2)}, {vr(O+2*i,2)}, {vr(X+2*i,2)}")
    a(f"s_cmp_lg_u32 s40, 0\ns_cbranch_scc1 {name}_finb\nv_mov_b32 v8, v{L}")
    for i in range(16): a(f"v_fma_f32 v8, v{O+i}, 0, v8")
    a(f"""v_cmp_ngt_f32 vcc, {f2u(2.0**60)}, v8
s_lshl_b32 s25, s8, 2
s_add_u32 s25, s25, 0x27fe0
v_mov_b32 v10, s25
s_cmp_lg_u64 vcc, 0
s_cselect_b32 s24, 1, 0
v_mov_b32 v9, s24
ds_write_b32 v10, v9
s_waitcnt lgkmcnt(0)
s_barrier
v_and_b32 v10, 7, v0
v_lshlrev_b32 v10, 2, v10
v_add_u32 v10, 0x27fe0, v10
ds_read_b32 v9, v10
s_waitcnt lgkmcnt(0)
v_cmp_ne_u32 vcc, 0, v9
s_nop 1
s_cmp_eq_u64 vcc, 0
s_cbranch_scc1 {name}_fin
s_barrier
s_mov_b32 s40, 2
s_mov_b32 s43, 0
{kvs}
s_mov_b32 s20, 0
v_mov_b32 v14, 0xff800000
v_mov_b32 v15, 0xff800000
{name}_mx:
buffer_load_dwordx4 {vr(Kf,4)}, v2, s[12:15], s20 offen
buffer_load_dwordx4 {vr(Kf+4,4)}, v2, s[12:15], s20 offen offset:1024
s_add_u32 s20, s20, 0x1000
s_waitcnt vmcnt(0)""")
    for b in B: a(mf32(b['SA'],Kf,b['Q'],'0'))
    for b in B: a(mf32(b['SA'],Kf+4,b['Q']+4))
    a("s_nop 15")
    for m,b in zip((14,15),B):
        for i in range(0,16,2): a(f"v_max3_f32 v{m}, v{b['SA']+i}, v{b['SA']+i+1}, v{m}")
    a(f"s_cmp_lt_u32 s20, 0x40000\ns_cbranch_scc1 {name}_mx")
    xreduce(a,[14,15],[8,9],"v_max_f32",('32',))
    a(f"s_mov_b32 s20, 0\ns_mov_b32 s22, 0")
    a.ext(dma())
    a(f"""s_mov_b32 s50, 0x7f000000
s_mov_b32 s53, s50
s_branch {name}_restart
{name}_wf:
s_lshl_b32 s24, s2, 2
s_add_u32 s24, s24, {FLW}
v_mov_b32 v8, 0
v_mov_b32 v9, 1
s_mov_b64 exec, 1
buffer_store_dword v9, v8, s[36:39], s24 offen
s_mov_b64 exec, -1
s_branch {name}_wfr
{name}_cs:
s_add_u32 s48, s4, {WS_CS}
s_addc_u32 s49, s5, 0
s_mul_i32 s24, s60, {F*4}
s_lshl_b32 s25, s61, 7
s_add_u32 s24, s24, s25
v_and_b32 v8, 1, v0
v_cmp_eq_u32 vcc, 1, v8
v_lshlrev_b32 v8, 6, v8
v_lshrrev_b32 v9, 4, v0
v_lshl_add_u32 v8, v9, 4, v8
v_add_u32 v8, s24, v8
v_cndmask_b32 v224, v{CSA}, v{CSA+4}, vcc
v_cndmask_b32 v225, v{CSA+1}, v{CSA+5}, vcc
v_cndmask_b32 v226, v{CSA+2}, v{CSA+6}, vcc
v_cndmask_b32 v227, v{CSA+3}, v{CSA+7}, vcc
s_mov_b32 exec_lo, 0x30003
s_mov_b32 exec_hi, 0x30003
global_store_dwordx4 v8, v[224:227], s[48:49] sc1
s_mov_b64 exec, -1
s_branch {name}_csr
{name}_sw:
s_bfe_u32 s24, s2, 0x10002
s_lshl_b32 s24, s24, 3
s_lshr_b32 s25, s2, 5
s_add_u32 s24, s24, s25
s_lshl_b32 s24, s24, 17
s_add_u32 s24, s24, {hex(WS_WO)}
s_add_u32 s12, s4, s24
s_addc_u32 s13, s5, 0
s_mov_b32 s14, 0x20000
s_mov_b32 s20, 0
s_mov_b32 s58, 0x8000
v_add_u32 v3, s44, v2
s_branch {name}_swr
{name}_finb:
s_barrier
{name}_fin:
v_rcp_f32 v8, v{L}
s_lshl_b32 s24, s10, 1
s_add_u32 s24, s24, s11
s_lshl_b32 s24, s24, 16
s_lshl_b32 s25, s9, 10
s_add_u32 s24, s24, s25
v_bfe_u32 v9, v0, 4, 1
v_lshlrev_b32 v9, 15, v9
v_and_b32 v10, 15, v0
v_lshl_add_u32 v9, v10, 4, v9
v_lshrrev_b32 v10, 5, v0
v_lshl_add_u32 v9, v10, 8, v9""")
    for i in range(8): a(f"v_pk_mul_f32 {vr(O+2*i,2)}, {vr(O+2*i,2)}, v[8:9] op_sel_hi:[1,0]")
    for i in range(8): a(cv(P+i,O+2*i))
    a(f"""buffer_store_dwordx4 {vr(P,4)}, v9, s[16:19], s24 offen
buffer_store_dwordx4 {vr(P+4,4)}, v9, s[16:19], s24 offen offset:512
s_nop 0""")
    stamp(a,4)
    a(f"""s_mov_b64 exec, -1
s_lshr_b32 s24, s10, 2
s_lshl_b32 s24, s24, 12
s_lshl_b32 s25, s9, 7
s_add_u32 s24, s24, s25
s_add_u32 s42, s24, {FL2}""")
    stamp_out(a,2,5)
    finish(a)
    return a.txt()

def wo(name):
    a=A(); a(f'{name}:'); stamp(a,-1); stamp(a,0)
    ACC=16; WF=32; XR=64; AR=72; NB=12; P=32
    a(f"""s_and_b32 s24, s2, 7
s_mov_b32 s8, s62
s_lshr_b32 s25, s2, 3
s_and_b32 s26, s24, 3
s_lshl_b32 s26, s26, 2
s_and_b32 s9, s25, 3
s_add_u32 s9, s9, s26
s_lshr_b32 s26, s24, 2
s_lshl_b32 s26, s26, 3
s_lshr_b32 s10, s25, 2
s_add_u32 s10, s10, s26
s_lshl_b32 s27, s9, 3
s_add_u32 s27, s27, s8
v_and_b32 v1, 15, v0
v_lshrrev_b32 v2, 4, v0
v_lshlrev_b32 v3, 4, v0
v_add_u32 v4, 0x10000, v3
v_lshlrev_b32 v5, 11, v1
v_lshl_add_u32 v5, v2, 3, v5
s_lshl_b32 s20, s27, 15
s_lshl_b32 s44, s8, 12
s_add_u32 s44, s44, 0x18000
s_lshl_b32 s21, s10, 17
s_add_u32 s21, s21, s44
s_lshl_b32 s22, s10, 7
s_add_u32 s22, s22, s20""")
    srd(a,12,4,WS_O,4*MB); srd(a,16,4,WS_WO,2*MB); srd(a,28,P_X,0,S*D*2)
    for i in range(16): a(f"v_mov_b32 v{ACC+i}, 0")
    a("s_waitcnt vmcnt(0)")
    mid=["s_mov_b32 m0, s44",f"s_mov_b32 s25, {FLW}"]+[f"buffer_load_dwordx4 v3, s[16:19], s21 offen offset:{i*1024} lds" for i in range(4)]
    mid+=["v_mov_b32 v240, v3","buffer_load_dwordx4 v[244:247], v3, s[36:39], s25 offen"]
    mid+=[f"buffer_load_dwordx2 {vr(XR+2*f,2)}, v5, s[28:31], s22 offen offset:{f*32}" for f in range(4)]
    stamp(a,1)
    a(f"s_lshr_b32 s24, s9, 1\ns_lshl_b32 s24, s24, 12\ns_add_u32 s24, s24, {FL2}"); handoff(a,24,32,8,mid)
    stamp(a,2)
    def ld(ks):
        r=[f"buffer_load_dwordx4 {vr(AR+4*(ks%NB),4)}, v3, s[12:15], s20 offen offset:{(ks%4)*1024}"]
        if ks%4==3: r.append("s_add_u32 s20, s20, 4096")
        return r
    rdw=lambda ks: [f"ds_read_b128 {vr(WF+16*(ks&1)+4*f,4)}, v{3 if ks<16 else 4} offset:{((ks%16)*4+f)*1024}" for f in range(4)]
    for ks in range(NB-1): a.ext(ld(ks))
    a.ext(rdw(0))
    for ks in range(32):
        if ks==12: a("s_barrier")
        nl=min(NB-2,31-ks)
        a(f"s_waitcnt vmcnt({nl}) lgkmcnt(0)")
        m=[mf16(ACC+4*f,WF+16*(ks&1)+4*f,AR+4*(ks%NB)) for f in range(4)]
        a.ext(interleave(m,(rdw(ks+1) if ks<31 else []),per=2))
        if ks+NB-1<32: a.ext(ld(ks+NB-1))
    stamp(a,3)
    pollw(a,240)
    srd(a,28,4,WS_H,4*MB); srd(a,32,4,WS_ST,16*S*8)
    a(f"""s_lshl_b32 s24, s27, 15
s_lshl_b32 s25, s10, 11
s_add_u32 s24, s24, s25
s_lshl_b32 s25, s9, 11
s_lshl_b32 s26, s10, 7
s_add_u32 s25, s25, s26
s_add_u32 s42, s25, {FL3}
s_nop 1""")
    for i in range(8): a(f"v_lshlrev_b32 v12, 16, v{XR+i}\nv_and_b32 v13, 0xffff0000, v{XR+i}\nv_pk_add_f32 {vr(ACC+2*i,2)}, {vr(ACC+2*i,2)}, v[12:13]")
    for fp in range(2):
        for i in range(4): a(f"v_cvt_pk_bf16_f32 v{P+4*fp+i}, v{ACC+8*fp+2*i}, v{ACC+8*fp+2*i+1}")
        a(f"buffer_store_dwordx4 {vr(P+4*fp,4)}, v3, s[28:31], s24 offen offset:{fp*1024}")
    a("v_mov_b32 v8, 0\nv_mov_b32 v9, 0\nv_mov_b32 v10, 0\nv_mov_b32 v11, 0")
    for i in range(8):
        a(f"v_lshlrev_b32 v12, 16, v{P+i}\nv_and_b32 v13, 0xffff0000, v{P+i}\nv_pk_add_f32 v[8:9], v[8:9], v[12:13]\nv_pk_fma_f32 v[10:11], v[12:13], v[12:13], v[10:11]")
    a("v_add_f32 v8, v8, v9\nv_add_f32 v9, v10, v11")
    xreduce(a,[8,9],[10,11])
    a(f"""s_lshl_b32 s24, s27, 7
s_lshl_b32 s25, s10, 14
s_add_u32 s24, s24, s25
v_lshlrev_b32 v10, 3, v0
s_mov_b64 exec, 0xffff
buffer_store_dwordx2 v[8:9], v10, s[32:35], s24 offen
s_mov_b64 exec, -1""")
    stamp(a,4); stamp_out(a,3,5)
    finish(a)
    return a.txt()
```

```python
S=2048; D=1024; F=3584; H=32; DH=32
MB=1<<20
WS_XN=0*MB; WS_Q=4*MB; WS_KV=8*MB; WS_O=16*MB; WS_H=20*MB; WS_G=24*MB
WS_ST=40*MB
WS_WQ=48*MB; WS_WO=54*MB; WS_W1=56*MB; WS_W2=64*MB
WS_CS=41*MB
KA_X,KA_WQKV,KA_WO,KA_BX,KA_W1,KA_B1,KA_W2,KA_B2,KA_OUT,KA_DBG,KA_WS=[8*i for i in range(11)]

class A:
    def __init__(s): s.l=[]
    def __call__(s,t):
        for x in t.strip('\n').split('\n'):
            x=x.strip()
            if not x: continue
            s.l.append(x if x.endswith(':') else '  '+x)
    def ext(s,ls):
        for x in ls: s(x)
    def txt(s): return '\n'.join(s.l)+'\n'

def vr(b,n=1): return f"v{b}" if n==1 else f"v[{b}:{b+n-1}]"
def sr(b,n=1): return f"s{b}" if n==1 else f"s[{b}:{b+n-1}]"
def mf16(d,a,b,c=None):
    c=vr(d,4) if c is None else c
    return f"v_mfma_f32_16x16x32_bf16 {vr(d,4)}, {vr(a,4)}, {vr(b,4)}, {c}"
def mf32(d,a,b,c=None):
    c=vr(d,16) if c is None else c
    return f"v_mfma_f32_32x32x16_bf16 {vr(d,16)}, {vr(a,4)}, {vr(b,4)}, {c}"
def srd(a,dst,base,off,size):
    if off:
        a(f"s_add_u32 s{dst}, s{base}, {hex(off)}\ns_addc_u32 s{dst+1}, s{base+1}, 0")
    else:
        a(f"s_mov_b32 s{dst}, s{base}\ns_mov_b32 s{dst+1}, s{base+1}")
    a(f"s_mov_b32 s{dst+2}, {hex(size)}\ns_mov_b32 s{dst+3}, 0x20000")
def interleave(mains, fills, start=0, per=1):
    out=[]; j=0
    for i,m in enumerate(mains):
        out.append(m)
        if i>=start:
            out+=fills[j:j+per]; j+=per
    return out+fills[j:]
def khead(name):
    return f".globl {name}\n.p2align 8\n.type {name},@function\n{name}:\n"
def kdesc(name,vg,sg=96):
    acc=(vg+3)//4*4
    return f""".p2align 6
.amdhsa_kernel {name}
  .amdhsa_next_free_vgpr {vg}
  .amdhsa_next_free_sgpr {sg}
  .amdhsa_accum_offset {acc}
  .amdhsa_group_segment_fixed_size 0
  .amdhsa_kernarg_size 88
  .amdhsa_user_sgpr_count 2
  .amdhsa_user_sgpr_kernarg_segment_ptr 1
  .amdhsa_system_sgpr_workgroup_id_x 1
.end_amdhsa_kernel
"""
import os
STAMP=int(os.environ.get('STAMP','0'))
WS_TS=44*MB
def stamp(a,i):
    if STAMP: a(f"s_memtime s[{64+2*i}:{65+2*i}]" if i>=0 else "s_memrealtime s[80:81]")
def stamp_out(a,kid,n,wsreg=4,wave='s8'):
    if not STAMP: return
    a("s_waitcnt vmcnt(0)"); stamp(a,n); a("s_memrealtime s[82:83]\ns_waitcnt lgkmcnt(0)")
    a(f"s_mov_b64 exec, 1\ns_lshl_b32 s84, s2, 3\ns_add_u32 s84, s84, {wave}\ns_lshl_b32 s84, s84, 6\ns_add_u32 s84, s84, {WS_TS+kid*(1<<18)}\nv_mov_b32 v250, s84")
    for i in range(n+1): a(f"v_mov_b32 v251, s{64+2*i}\nglobal_store_dword v250, v251, s[{wsreg}:{wsreg+1}] offset:{4*i}")
    a(f"v_mov_b32 v251, s80\nglobal_store_dword v250, v251, s[{wsreg}:{wsreg+1}] offset:56\nv_mov_b32 v251, s82\nglobal_store_dword v250, v251, s[{wsreg}:{wsreg+1}] offset:60\ns_mov_b64 exec, -1")
SC=os.environ.get('SC','sc1')

def wlane(a,dst,ldw_s,perm,t):
    a(f"""v_lshrrev_b32 v{t}, 4, v0
v_bfe_u32 v{t+1}, v0, 2, 2
v_and_b32 v{t+2}, 1, v{t}
v_and_b32 v{t+3}, 3, v0
v_lshlrev_b32 v{t+4}, 1, v{t+2}
v_xor_b32 v{t+3}, v{t+3}, v{t+4}""")
    if perm=='id':  a(f"v_lshl_add_u32 v{dst}, v{t}, 2, v{t+1}")
    if perm=='nat': a(f"v_lshl_add_u32 v{dst}, v{t}, 3, v{t+1}")
    if perm=='att': a(f"v_lshrrev_b32 v{t+4}, 1, v{t}\nv_lshlrev_b32 v{t+4}, 4, v{t+4}\nv_lshl_add_u32 v{dst}, v{t+2}, 2, v{t+1}\nv_add_u32 v{dst}, v{dst}, v{t+4}")
    a(f"v_mul_lo_u32 v{dst}, v{dst}, {ldw_s}\nv_lshl_add_u32 v{dst}, v{t+3}, 4, v{dst}")
BMUL={'id':16,'nat':4,'att':8}
def trlane(a,dst,base_s,t):
    a(f"""v_lshrrev_b32 v{dst}, 2, v0
v_lshlrev_b32 v{dst}, 6, v{dst}
v_and_b32 v{t}, 3, v0
v_lshl_add_u32 v{dst}, v{t}, 3, v{dst}
v_bfe_u32 v{t}, v0, 4, 1
v_lshl_add_u32 v{dst}, v{t}, 5, v{dst}
v_add_u32 v{dst}, {base_s}, v{dst}
v_xor_b32 v{dst+1}, 32, v{dst}""")
def trreads(dst,adr,off=0):
    return [f"ds_read_b64_tr_b16 {vr(dst+4*h+2*b,2)}, v{adr+h} offset:{off+b*1024}" for h in range(2) for b in range(2)]
AV=int(os.environ.get('AV','1')); PRIO=int(os.environ.get('PRIO','0')); NORT=int(os.environ.get('NORT','0'))

WS_FL=42*MB; FL1=0; FL2=0x8000; FL3=0x10000; FL4=0x18000; FLW=0x20000; FL_SZ=0x28000
P_X,P_WO,P_W1,P_B1,P_W2,P_B2,P_OUT=88,90,92,94,96,98,100
SLP=int(os.environ.get('SLP','2'))
_uid=[0]
def poll(a,soff,cnt,t):
    _uid[0]+=1; L=f"poll{_uid[0]}"
    nld=max(cnt//64,1)
    a(f"v_and_b32 v{t}, {min(cnt,64)-1}, v0\nv_lshlrev_b32 v{t}, 7, v{t}")
    for i in range(1,nld): a(f"v_add_u32 v{t+i}, {i*8192}, v{t}")
    a(f"s_mov_b32 s63, 0x40000\n{L}:")
    for i in range(nld): a(f"buffer_load_dword v{t+4+i}, v{t+i}, s[36:39], s{soff} offen sc1")
    a("s_sub_u32 s63, s63, 1\ns_waitcnt vmcnt(0)")
    for i in range(1,nld): a(f"v_and_b32 v{t+4}, v{t+4}, v{t+4+i}")
    a(f"""v_cmp_eq_u32 vcc, 0, v{t+4}
s_cbranch_scc1 {L}x
s_cbranch_vccz {L}x
s_sleep {SLP}
s_branch {L}
{L}x:""")
def pollw(a,t):
    a(f"""s_mov_b32 s63, 0x40000
s_mov_b32 s24, {FLW}
pollw:
s_sub_u32 s63, s63, 1
s_waitcnt vmcnt(0)
v_and_b32 v{t+4}, v{t+4}, v{t+5}
v_and_b32 v{t+6}, v{t+6}, v{t+7}
v_and_b32 v{t+4}, v{t+4}, v{t+6}
v_cmp_eq_u32 vcc, 0, v{t+4}
s_cbranch_scc1 pollwx
s_cbranch_vccz pollwx
s_sleep 4
buffer_load_dwordx4 {vr(t+4,4)}, v{t}, s[36:39], s24 offen sc1
s_branch pollw
pollwx:""")
def setflag(a,soff,t):
    a(f"v_mov_b32 v{t}, 0\nv_mov_b32 v{t+1}, 1\ns_mov_b64 exec, 1\nbuffer_store_dword v{t+1}, v{t}, s[36:39], s{soff} offen\ns_mov_b64 exec, -1")
def handoff(a,soff,cnt,t,mid=None):
    _uid[0]+=1; L=f"ho{_uid[0]}"
    srd(a,36,4,WS_FL,FL_SZ)
    a(f"s_barrier\ns_cmp_eq_u32 s62, 4\ns_cbranch_scc0 {L}a")
    setflag(a,42,t)
    a(f"{L}a:\ns_cmp_eq_u32 s62, 7\ns_cbranch_scc0 {L}")
    poll(a,soff,cnt,t)
    if mid:
        a("s_barrier"); a.ext(mid); a(f"s_branch {L}b\n{L}:"); a.ext(mid); a(f"s_barrier\n{L}b:")
    else: a(f"{L}:\ns_barrier")
def finish(a):
    o=[]
    for x in a.l:
        y=x.strip()
        if y.startswith('buffer_store'): x+=' sc1'
        elif y.startswith('buffer_load') and ' nt' not in y and ' sc1' not in y:
            x=x.replace(' lds',' sc1 lds') if y.endswith(' lds') else x+' sc1'
        o.append(x)
    a.l=o

CPF=int(os.environ.get('CPF','1'))
def codepf(a,sd,vt,vd):
    if not CPF: return
    _uid[0]+=1; L=f"pc{_uid[0]}"
    a(f"""s_getpc_b64 s[{sd}:{sd+1}]
{L}:
s_add_u32 s{sd}, s{sd}, main_go-{L}
s_addc_u32 s{sd+1}, s{sd+1}, (main_go-{L})>>32
s_lshr_b32 s{sd+2}, s2, 3
s_lshl_b32 s{sd+2}, s{sd+2}, 11
v_lshl_add_u32 v{vt}, v0, 4, s{sd+2}
s_mov_b32 s{sd+2}, main_end-main_go
s_mov_b32 s{sd+3}, 0x20000
buffer_load_dwordx4 {vr(vd,4)}, v{vt}, s[{sd}:{sd+3}], 0 offen
buffer_load_dwordx4 {vr(vd,4)}, v{vt}, s[{sd}:{sd+3}], 0 offen offset:1024""")
```

```python
from common import *
from gemm import f2u

def xreduce(a, regs, tmp, op="v_add_f32", sws=('16','32')):
    for sw in sws:
        for r,t in zip(regs,tmp): a(f"v_mov_b32 v{t}, v{r}")
        a("s_nop 1")
        for r,t in zip(regs,tmp): a(f"v_permlane{sw}_swap_b32 v{r}, v{t}")
        a("s_nop 1")
        for r,t in zip(regs,tmp): a(f"{op} v{r}, v{r}, v{t}")

def ln1(name):
    a=A()
    X=16; U=32; R=64
    a(f"""s_cmp_ge_u32 s2, 256
s_cbranch_scc1 {name}_end
s_load_dwordx4 s[4:7], s[0:1], {KA_X}
s_load_dwordx2 s[8:9], s[0:1], {KA_WS}
s_load_dwordx2 s[44:45], s[0:1], {KA_WO}""")
    stamp(a,-1); stamp(a,0)
    a(f"""v_lshrrev_b32 v1, 6, v0
v_and_b32 v0, 63, v0
v_and_b32 v2, 7, v0
v_readfirstlane_b32 s10, v1
v_lshrrev_b32 v3, 3, v0
v_lshlrev_b32 v4, 11, v2
v_lshl_add_u32 v4, v3, 4, v4
s_lshl_b32 s20, s2, 14
s_lshl_b32 s21, s10, 9
s_add_u32 s21, s21, s20
s_movk_i32 s30, 6144
s_waitcnt lgkmcnt(0)""")
    srd(a,12,4,0,S*D*2)
    for i in range(4): a(f"buffer_load_dwordx4 {vr(X+4*i,4)}, v4, s[12:15], s21 offen offset:{i*128}")
    srd(a,16,8,WS_FL,FL_SZ)
    a("v_lshlrev_b32 v8, 2, v0\nv_mov_b32 v9, 0\ns_lshl_b32 s22, s2, 10\ns_lshl_b32 s23, s10, 8\ns_add_u32 s22, s22, s23\nbuffer_store_dword v9, v8, s[16:19], s22 offen")
    a(f"""s_lshr_b32 s31, s2, 3
s_and_b32 s32, s2, 7
s_cmp_eq_u32 s10, 3
s_cselect_b32 s24, s44, s6
s_cselect_b32 s25, s45, s7
s_cselect_b32 s26, 2, 6
s_mov_b32 s27, 0x20000
s_cselect_b32 s30, 0x800, s30
s_cselect_b32 s38, 0, s10
s_cselect_b32 s39, 4, 12
s_cselect_b32 s40, {6*MB}, 0
s_cselect_b32 s41, 4, 8
s_cselect_b32 s43, 8, 4
s_mul_i32 s41, s41, s30
s_mul_i32 s43, s43, s30
s_lshl_b32 s46, s30, 4
s_lshl_b32 s26, s26, 20
v_lshrrev_b32 v11, 4, v0
v_and_b32 v12, 15, v0
v_lshlrev_b32 v13, 1, v11
v_xor_b32 v12, v12, v13
v_mul_lo_u32 v10, v11, s30
v_lshl_add_u32 v10, v12, 4, v10
v_xor_b32 v11, 0x80, v10
s_lshl_b32 s38, s38, 11
s_mul_i32 s33, s31, s30
s_lshl_b32 s33, s33, 5
s_lshl_b32 s34, s32, 8
s_add_u32 s33, s33, s34
s_add_u32 s33, s33, s38
s_lshl_b32 s35, s10, 13
s_add_u32 s35, s35, 1024""")
    for d in range(8):
        b,g=d>>2,d&3
        a(f"s_add_u32 m0, s35, {d*1024}\ns_mov_b32 s34, s33")
        if g>>1: a("s_add_u32 s34, s34, s46")
        if g&1: a("s_add_u32 s34, s34, s41")
        if b: a("s_add_u32 s34, s34, s43")
        a(f"buffer_load_dwordx4 v{10+(d&1)}, s[24:27], s34 offen nt lds")
    srd(a,16,8,WS_XN,4*MB); srd(a,48,8,WS_WQ,8*MB)
    a(f"""v_lshrrev_b32 v14, 2, v0
v_and_b32 v15, 7, v14
v_lshlrev_b32 v14, 8, v14
v_lshl_add_u32 v14, v15, 5, v14
v_and_b32 v15, 3, v0
v_lshl_add_u32 v14, v15, 3, v14
v_add_u32 v14, s35, v14
s_lshl_b32 s33, s32, 6
s_add_u32 s33, s33, s31
s_mul_i32 s33, s33, s39
s_lshl_b32 s33, s33, 10
s_add_u32 s33, s33, s40
s_add_u32 s52, s33, s38
s_lshl_b32 s34, s39, 9
s_add_u32 s53, s52, s34
s_lshl_b32 s34, s39, 15
s_add_u32 s54, s52, s34
s_add_u32 s55, s53, s34
s_lshr_b32 s22, s2, 1
s_lshl_b32 s22, s22, 15
s_and_b32 s23, s2, 1
s_lshl_b32 s23, s23, 7
s_add_u32 s22, s22, s23
s_lshl_b32 s23, s10, 13
s_add_u32 s22, s22, s23
s_add_u32 s23, s22, 4096
v_lshlrev_b32 v5, 4, v2
s_lshl_b32 s36, s10, 2
v_add_u32 v6, s36, v5
v_lshl_add_u32 v7, v3, 8, v5
v_mov_b32 v8, 0
v_mov_b32 v9, 0""")
    for i in range(4):
        a(f"s_waitcnt vmcnt({12-i})")
        for j in range(4):
            r=4*i+j
            a(f"v_lshlrev_b32 v{U+2*r}, 16, v{X+r}\nv_and_b32 v{U+2*r+1}, 0xffff0000, v{X+r}\nv_pk_add_f32 v[8:9], v[8:9], {vr(U+2*r,2)}")
    def wgreduce(off):
        a("v_add_f32 v8, v8, v9\ns_nop 1\nv_add_f32_dpp v8, v8, v8 row_ror:8 row_mask:0xf bank_mask:0xf")
        xreduce(a,[8],[9])
        a(f"""ds_write_b32 v6, v8 offset:{off}
s_waitcnt lgkmcnt(0)
s_barrier
ds_read_b128 v[{R}:{R+3}], v5 offset:{off}
s_waitcnt lgkmcnt(0)
v_add_f32 v12, v{R}, v{R+1}
v_add_f32 v13, v{R+2}, v{R+3}
v_add_f32 v12, v12, v13""")
    stamp(a,1)
    wgreduce(0)
    stamp(a,2)
    a(f"v_mul_f32 v10, {f2u(-1.0/D)}, v12\nv_mov_b32 v8, 0\nv_mov_b32 v9, 0")
    for r in range(16): a(f"v_pk_add_f32 {vr(U+2*r,2)}, {vr(U+2*r,2)}, v[10:11] op_sel_hi:[1,0]")
    for r in range(16): a(f"v_pk_fma_f32 v[8:9], {vr(U+2*r,2)}, {vr(U+2*r,2)}, v[8:9]")
    wgreduce(256)
    a(f"v_mov_b32 v13, {f2u(1e-5)}\nv_fmac_f32 v13, {f2u(1.0/D)}, v12\nv_rsq_f32 v10, v13\ns_nop 0")
    for i in range(4):
        for j in range(4):
            r=4*i+j
            a(f"v_pk_mul_f32 {vr(U+2*r,2)}, {vr(U+2*r,2)}, v[10:11] op_sel_hi:[1,0]")
        for j in range(4):
            r=4*i+j
            a(f"v_cvt_pk_bf16_f32 v{X+r}, v{U+2*r}, v{U+2*r+1}")
        a(f"buffer_store_dwordx4 {vr(X+4*i,4)}, v7, s[16:19], s{22+(i>>1)} offen offset:{(i&1)*2048}")
    stamp(a,3)
    a("v_lshlrev_b32 v7, 4, v0\ns_waitcnt vmcnt(4)")
    codepf(a,56,8,40)
    for f in range(8):
        a(f"v_xor_b32 v15, {f*32}, v14\nds_read_b64_tr_b16 {vr(R+4*f,2)}, v15\nds_read_b64_tr_b16 {vr(R+4*f+2,2)}, v15 offset:4096")
    for f in range(8):
        if f%2==0: a(f"s_waitcnt lgkmcnt({0 if STAMP else 12-4*(f//2)})")
        a(f"buffer_store_dwordx4 {vr(R+4*f,4)}, v7, s[48:51], s{52+f//2} offen offset:{(f%2)*1024}")
    stamp(a,4); stamp_out(a,0,5,8,'s10')
    a(f"{name}_end:\ns_endpgm")
    if SC: a.l=[x+' '+SC if x.strip().startswith('buffer_store') else x for x in a.l]
    return dict(name=name,text=khead(name)+a.txt(),desc=kdesc(name,256 if STAMP else 96,96),grid=256,block=256,lds=1024+4*8192)

def attn(name):
    a=A()
    a(f'{name}:')
    stamp(a,-1); stamp(a,0)
    B=[dict(SA=16,SB=32,O=48,L=64,NM=68,Q=84,P=92),dict(SA=100,SB=116,O=132,L=148,NM=152,Q=168,P=176)]
    Kf=184; Vf=192; ON=200; WT=204; CSA=212; ON1=220; VT=224; STG=0x20000
    a(f"""s_and_b32 s24, s2, 7
s_mov_b32 s8, s62
s_lshr_b32 s25, s2, 3
s_lshl_b32 s9, s24, 2
s_lshr_b32 s26, s25, 3
s_add_u32 s9, s9, s26
s_and_b32 s25, s25, 7
s_and_b32 s3, s8, 3
s_lshr_b32 s11, s8, 2
s_lshl_b32 s10, s25, 2
s_add_u32 s10, s10, s3
v_lshlrev_b32 v2, 4, v0
s_lshl_b32 s44, s8, 12
s_lshl_b32 s45, s11, 14
v_add_u32 v4, s45, v2
s_mov_b32 s40, 0
s_cmp_eq_u32 s8, 0
s_cselect_b32 s41, 1, 0
s_cmp_lt_u32 s2, 112
s_cselect_b32 s43, 2, 0
s_mov_b32 s60, 0
s_mov_b32 s61, 0
s_mov_b32 s15, 0x20000""")
    kvs=f"""s_lshl_b32 s24, s9, 18
s_add_u32 s24, s24, {hex(WS_KV)}
s_add_u32 s12, s4, s24
s_addc_u32 s13, s5, 0
s_mov_b32 s14, 0x40000
s_lshl_b32 s25, s11, 17
s_lshl_b32 s26, s3, 12
s_add_u32 s25, s25, s26
v_add_u32 v3, s25, v2
s_movk_i32 s58, 0x4000"""
    a(kvs)
    srd(a,16,4,WS_Q,4*MB)
    def dma():
        return ["s_add_u32 m0, s22, s44","s_add_u32 s22, s22, 0x8000"]+[f"buffer_load_dwordx4 v3, s[12:15], s20 offen offset:{i*1024} lds" for i in range(4)]+["s_add_u32 s20, s20, 0x4000","s_and_b32 s22, s22, 0x1ffff"]
    a(f"""s_cmp_lt_u32 s2, 112
s_cbranch_scc0 {name}_rt2""")
    srd(a,28,P_W1,0,D*F*2); srd(a,32,4,WS_W1,D*F*2)
    a(f"""s_movk_i32 s56, {F*2}
s_mul_i32 s60, s2, 4682
s_lshr_b32 s60, s60, 16
s_mul_i32 s25, s60, 14
s_sub_u32 s25, s2, s25
s_lshl_b32 s61, s25, 3
s_add_u32 s61, s61, s8
s_mul_i32 s50, s60, {128*F*2}
s_lshl_b32 s24, s61, 6
s_add_u32 s50, s50, s24
s_mov_b32 s51, {32*F*2}
s_mov_b32 s52, {16*F*2}
s_mul_i32 s24, s61, 9363
s_lshr_b32 s24, s24, 16
s_mul_i32 s25, s24, 7
s_sub_u32 s25, s61, s25
s_lshl_b32 s24, s24, 5
s_lshl_b32 s26, s60, 2
s_add_u32 s24, s24, s26
s_mul_i32 s24, s24, 7
s_add_u32 s24, s24, s25
s_lshl_b32 s53, s24, 11
s_movk_i32 s54, {7*2048}
s_movk_i32 s55, {7*2048}""")
    wlane(a,10,'s56','id',11)
    a(f"""s_branch {name}_rt9
{name}_rt2:
s_movk_i32 s56, 2048
s_movk_i32 s51, 64
s_movk_i32 s54, 2048""")
    srd(a,28,P_W2,0,D*F*2); srd(a,32,4,WS_W2,D*F*2)
    a(f"""s_sub_u32 s26, s2, 112
s_mul_i32 s53, s8, {2*112*4096}
s_mov_b32 s55, {112*4096-2048}
s_mul_i32 s24, s26, 9363
s_lshr_b32 s24, s24, 16
s_mul_i32 s25, s24, 7
s_sub_u32 s25, s26, s25
s_cmp_eq_u32 s25, 3
s_cbranch_scc1 {name}_rt2n
s_mov_b32 s52, {16*2048}""")
    wlane(a,10,'s56','id',11)
    a(f"s_branch {name}_rt8\n{name}_rt2n:\ns_movk_i32 s52, {4*2048}")
    wlane(a,10,'s56','nat',11)
    a(f"""{name}_rt8:
s_lshl_b32 s50, s26, 16
s_lshl_b32 s24, s8, 8
s_add_u32 s50, s50, s24
s_lshl_b32 s24, s26, 12
s_add_u32 s53, s53, s24
s_cmp_lt_u32 s2, 224
s_cselect_b32 s50, s50, 0x7f000000
s_cselect_b32 s53, s53, 0x7f000000
{name}_rt9:
s_add_u32 s57, s44, {STG}""")
    trlane(a,12,'s57',11)
    for i in range(8): a(f"v_mov_b32 v{CSA+i}, 0")
    for i in range(4): a(f"v_mov_b32 v{ON1+i}, 0x3f803f80")
    a(f"""s_sub_u32 s53, s53, s54
s_sub_u32 s53, s53, s55
v_add_u32 v11, s57, v2
ds_write_b128 v11, {vr(CSA,4)} offset:2048
ds_write_b128 v11, {vr(CSA,4)} offset:3072
v_xor_b32 v12, 0x800, v12
v_xor_b32 v13, 0x800, v13""")
    if NORT: a("s_mov_b32 s50, 0x7f000000\ns_mov_b32 s53, s50")
    a(f"s_lshr_b32 s24, s9, 1\ns_lshl_b32 s24, s24, 11\ns_add_u32 s24, s24, {FL1}\ns_waitcnt vmcnt(0)"); handoff(a,24,16,16)
    stamp(a,1)
    a(f"""s_lshl_b32 s24, s9, 5
s_add_u32 s24, s24, s10
s_lshl_b32 s24, s24, 12""")
    for i in range(4): a(f"buffer_load_dwordx4 {vr(B[i>>1]['Q']+4*(i&1),4)}, v2, s[16:19], s24 offen offset:{i*1024}")
    a(f"s_mov_b32 s20, 0\ns_mov_b32 s22, 0")
    a.ext(dma())
    a(f"{name}_restart:")
    srd(a,16,4,WS_O,4*MB)
    a(f"""v_lshrrev_b32 v8, 4, v0
v_lshrrev_b32 v5, 2, v0
v_xor_b32 v8, v8, v5
v_and_b32 v8, 1, v8
v_cmp_eq_u32 vcc, 0, v8
v_mov_b32 v5, 0x3f803f80
s_nop 1""")
    for i in range(4): a(f"v_cndmask_b32 v{ON+i}, 0, v5, vcc")
    for b in B:
        for i in range(20): a(f"v_mov_b32 v{b['O']+i}, 0")
        for i in range(4): a(f"v_mov_b32 v{b['P']+4+i}, 0")
    for i in range(4): a(f"v_mov_b32 v{Vf+4+i}, 0")
    a(f"""v_mov_b32 v6, v4
v_add_u32 v7, 0x8000, v4
s_mov_b32 s23, 8
s_mov_b32 s21, 0x8000
s_waitcnt vmcnt(0)
s_barrier
ds_read_b128 {vr(WT,4)}, v2
ds_read_b128 {vr(WT+4,4)}, v2 offset:1024
ds_read_b128 {vr(Kf,4)}, v6
ds_read_b128 {vr(Kf+4,4)}, v6 offset:1024
s_cmp_lg_u32 s40, 0
s_cbranch_scc1 {name}_havemax
s_waitcnt lgkmcnt(2)""")
    for b in B: a(mf32(b['SA'],WT,b['Q'],'0'))
    for b in B: a(mf32(b['SA'],WT+4,b['Q']+4))
    a("s_nop 11")
    for m,b in zip((14,15),B):
        SA=b['SA']; a(f"v_max3_f32 v{m}, v{SA}, v{SA+1}, v{SA+2}")
        for i in range(3,15,2): a(f"v_max3_f32 v{m}, v{SA+i}, v{SA+i+1}, v{m}")
        a(f"v_max_f32 v{m}, v{SA+15}, v{m}")
    xreduce(a,[14,15],[8,9],"v_max_f32",('32',))
    a(f"{name}_havemax:")
    stamp(a,2)
    for m,b in zip((14,15),B):
        for i in range(16): a(f"v_sub_f32 v{b['NM']+i}, 0, v{m}")
    a("s_waitcnt lgkmcnt(0)")
    for i in range(8): a(f"v_mov_b32 v{WT+i}, 0")
    for b in B: a(mf32(b['SA'],Kf,b['Q'],vr(b['NM'],16)))
    for b in B: a(mf32(b['SA'],Kf+4,b['Q']+4))
    a.ext(dma()+dma())
    a(f"""ds_read_b128 {vr(Kf,4)}, v6 offset:4096
ds_read_b128 {vr(Kf+4,4)}, v6 offset:{4096+1024}
ds_read_b128 {vr(Vf,4)}, v6 offset:2048
s_waitcnt lgkmcnt(0)
s_nop 7
.p2align 5
{name}_loop:""")
    def rd(dst,t,off):
        return [f"ds_read_b128 {vr(dst,4)}, v{6 if t<4 else 7} offset:{(t%4)*4096+off}"]
    ex=lambda s,i: f"v_exp_f32 v{s+i}, v{s+i}"
    cv=lambda d,s: f"v_cvt_pk_bf16_f32 v{d}, v{s}, v{s+1}"
    for t in range(4):
        if t==2: a("s_waitcnt vmcnt(8)\ns_barrier")
        X=[[],[],[],[]]; W2=2
        kv=lambda i: [f"buffer_load_dwordx4 v3, s[12:15], s20 offen offset:{i*1024} lds"]
        if t==0: a(f"s_cmp_eq_u32 s23, s43\ns_cbranch_scc1 {name}_cs\n{name}_csr:")
        if t==1: a(f"s_cmp_eq_u32 s23, 3\ns_cbranch_scc1 {name}_sw\n{name}_swr:")
        if t==2: a(f"s_cmp_eq_u32 s23, s41\ns_cbranch_scc1 {name}_wf\n{name}_wfr:")
        if t==2: X[0]=["s_add_u32 m0, s22, s44","s_add_u32 s22, s22, 0x8000","s_and_b32 s22, s22, 0x1ffff"]; X[1]=kv(0); X[3]=kv(1)
        if t==3: X[0]=kv(2); X[1]=trreads(WT,12); W2=6; X[2]=kv(3); X[3]=["s_add_u32 s20, s20, s58","v_xor_b32 v12, 0x800, v12","v_xor_b32 v13, 0x800, v13"]
        if t==0:
            X[0]=["s_sub_u32 s24, s23, 3","s_cmp_lt_u32 s24, 4","s_cselect_b32 s25, s53, 0x7f000000",f"buffer_store_dwordx4 {vr(WT,4)}, v2, s[32:35], s25 offen"]
            X[1]=[mf16(CSA,WT,ON1),"s_add_u32 s53, s53, s54","s_mov_b32 s24, s54"]
            X[2]=["s_mov_b32 s54, s55","s_mov_b32 s55, s24",f"buffer_store_dwordx4 {vr(WT+4,4)}, v2, s[32:35], s25 offen offset:1024"]
            X[3]=[mf16(CSA+4,WT+4,ON1)]
        if t==1:
            X[0]=["s_cmp_gt_u32 s23, 4","s_mov_b32 m0, s57","s_cselect_b32 s25, s50, 0x7f000000","buffer_load_dwordx4 v10, s[28:31], s25 offen nt lds"]
            X[2]=["s_add_u32 m0, s57, 1024","s_add_u32 s25, s25, s52","buffer_load_dwordx4 v10, s[28:31], s25 offen nt lds"]
            X[3]=["s_add_u32 s50, s50, s51","s_xor_b32 s57, s57, 0x800"]
        x=[]
        for b in B:
            C,N=(b['SA'],b['SB']) if t%2==0 else (b['SB'],b['SA'])
            x.append(dict(E=[ex(C,i) for i in range(16)],Cv=[cv(b['P']+i,C+2*i) for i in range(8)],
              qk0=[mf32(N,Kf,b['Q'],vr(b['NM'],16))],qk1=[mf32(N,Kf+4,b['Q']+4)],pv1=[mf32(b['O'],Vf+4,b['P']+4)],pv0=[mf32(b['O'],Vf,b['P'])],
              l1=[mf16(b['L'],ON,b['P']+4)],l0=[mf16(b['L'],ON,b['P'])]))
        u,v=x; W=["s_waitcnt lgkmcnt(2)"]
        tail=["s_add_u32 s21, s21, 0x8000","s_and_b32 s21, s21, 0x1ffff","s_sub_u32 s23, s23, 1","s_cmp_lg_u32 s23, 0","v_mov_b32 v6, v7","v_add_u32 v7, s21, v4"] if t==3 else []
        a(f's_setprio {3-((t+2)%4)}')
        a.ext(W+u['qk0']+u['E'][0:4]+v['qk0']+rd(Kf,t+2,0)+u['E'][4:8]+u['pv1']+X[0]+v['E'][0:4]+v['pv1']+rd(Vf+4,t,3072)+v['E'][4:8]+X[1]+u['l1']+u['Cv'][0:4]+v['l1']+v['Cv'][0:4])
        a.ext([f"s_waitcnt lgkmcnt({W2})"]+u['qk1']+u['E'][8:12]+v['qk1']+rd(Kf+4,t+2,1024)+u['E'][12:16]+u['pv0']+X[2]+v['E'][8:12]+v['pv0']+rd(Vf,t+1,2048)+v['E'][12:16]+X[3]+u['l0']+u['Cv'][4:8]+v['l0']+tail+v['Cv'][4:8])
    a(f"s_cbranch_scc1 {name}_loop\ns_setprio 0\ns_waitcnt lgkmcnt(0)")
    for b in B: a(mf32(b['O'],Vf+4,b['P']+4)); a(mf16(b['L'],ON,b['P']+4))
    stamp(a,3)
    O=B[0]['O']; L=B[0]['L']; P=B[0]['P']; O1=B[1]['O']; X=B[0]['SA']
    a(f"""s_mul_i32 s24, s8, 5120
s_xor_b32 s25, s8, 4
s_mul_i32 s25, s25, 5120
s_add_u32 s24, s24, 0x18000
s_add_u32 s25, s25, 0x18000
v_add_u32 v8, s24, v2
v_add_u32 v9, s25, v2
s_waitcnt vmcnt(4)
s_barrier
s_nop 7
s_cmp_eq_u32 s11, 0
s_cbranch_scc1 {name}_m0""")
    for i in range(20): a(f"v_swap_b32 v{O+i}, v{O1+i}")
    a(f"{name}_m0:")
    for i in range(5): a(f"ds_write_b128 v8, {vr(O1+4*i,4)} offset:{i*1024}")
    a("s_waitcnt lgkmcnt(0)\ns_barrier")
    for i in range(5): a(f"ds_read_b128 {vr(X+4*i,4)}, v9 offset:{i*1024}")
    a("s_waitcnt lgkmcnt(0)")
    for i in range(9): a(f"v_pk_add_f32 {vr(O+2*i,2)}, {vr(O+2*i,2)}, {vr(X+2*i,2)}")
    a(f"s_cmp_lg_u32 s40, 0\ns_cbranch_scc1 {name}_finb\nv_mov_b32 v8, v{L}")
    for i in range(16): a(f"v_fma_f32 v8, v{O+i}, 0, v8")
    a(f"""v_cmp_ngt_f32 vcc, {f2u(2.0**60)}, v8
s_lshl_b32 s25, s8, 2
s_add_u32 s25, s25, 0x27fe0
v_mov_b32 v10, s25
s_cmp_lg_u64 vcc, 0
s_cselect_b32 s24, 1, 0
v_mov_b32 v9, s24
ds_write_b32 v10, v9
s_waitcnt lgkmcnt(0)
s_barrier
v_and_b32 v10, 7, v0
v_lshlrev_b32 v10, 2, v10
v_add_u32 v10, 0x27fe0, v10
ds_read_b32 v9, v10
s_waitcnt lgkmcnt(0)
v_cmp_ne_u32 vcc, 0, v9
s_nop 1
s_cmp_eq_u64 vcc, 0
s_cbranch_scc1 {name}_fin
s_barrier
s_mov_b32 s40, 2
s_mov_b32 s43, 0
{kvs}
s_mov_b32 s20, 0
v_mov_b32 v14, 0xff800000
v_mov_b32 v15, 0xff800000
{name}_mx:
buffer_load_dwordx4 {vr(Kf,4)}, v2, s[12:15], s20 offen
buffer_load_dwordx4 {vr(Kf+4,4)}, v2, s[12:15], s20 offen offset:1024
s_add_u32 s20, s20, 0x1000
s_waitcnt vmcnt(0)""")
    for b in B: a(mf32(b['SA'],Kf,b['Q'],'0'))
    for b in B: a(mf32(b['SA'],Kf+4,b['Q']+4))
    a("s_nop 15")
    for m,b in zip((14,15),B):
        for i in range(0,16,2): a(f"v_max3_f32 v{m}, v{b['SA']+i}, v{b['SA']+i+1}, v{m}")
    a(f"s_cmp_lt_u32 s20, 0x40000\ns_cbranch_scc1 {name}_mx")
    xreduce(a,[14,15],[8,9],"v_max_f32",('32',))
    a(f"s_mov_b32 s20, 0\ns_mov_b32 s22, 0")
    a.ext(dma())
    a(f"""s_mov_b32 s50, 0x7f000000
s_mov_b32 s53, s50
s_branch {name}_restart
{name}_wf:
s_lshl_b32 s24, s2, 2
s_add_u32 s24, s24, {FLW}
v_mov_b32 v8, 0
v_mov_b32 v9, 1
s_mov_b64 exec, 1
buffer_store_dword v9, v8, s[36:39], s24 offen
s_mov_b64 exec, -1
s_branch {name}_wfr
{name}_cs:
s_add_u32 s48, s4, {WS_CS}
s_addc_u32 s49, s5, 0
s_mul_i32 s24, s60, {F*4}
s_lshl_b32 s25, s61, 7
s_add_u32 s24, s24, s25
v_and_b32 v8, 1, v0
v_cmp_eq_u32 vcc, 1, v8
v_lshlrev_b32 v8, 6, v8
v_lshrrev_b32 v9, 4, v0
v_lshl_add_u32 v8, v9, 4, v8
v_add_u32 v8, s24, v8
v_cndmask_b32 v224, v{CSA}, v{CSA+4}, vcc
v_cndmask_b32 v225, v{CSA+1}, v{CSA+5}, vcc
v_cndmask_b32 v226, v{CSA+2}, v{CSA+6}, vcc
v_cndmask_b32 v227, v{CSA+3}, v{CSA+7}, vcc
s_mov_b32 exec_lo, 0x30003
s_mov_b32 exec_hi, 0x30003
global_store_dwordx4 v8, v[224:227], s[48:49] sc1
s_mov_b64 exec, -1
s_branch {name}_csr
{name}_sw:""")
    codepf(a,12,8,252)
    a(f"""s_bfe_u32 s24, s2, 0x10002
s_lshl_b32 s24, s24, 3
s_lshr_b32 s25, s2, 5
s_add_u32 s24, s24, s25
s_lshl_b32 s24, s24, 17
s_add_u32 s24, s24, {hex(WS_WO)}
s_add_u32 s12, s4, s24
s_addc_u32 s13, s5, 0
s_mov_b32 s14, 0x20000
s_mov_b32 s20, 0
s_mov_b32 s58, 0x8000
v_add_u32 v3, s44, v2
s_branch {name}_swr
{name}_finb:
s_barrier
{name}_fin:
v_rcp_f32 v8, v{L}
s_lshl_b32 s24, s10, 1
s_add_u32 s24, s24, s11
s_lshl_b32 s24, s24, 16
s_lshl_b32 s25, s9, 10
s_add_u32 s24, s24, s25
v_bfe_u32 v9, v0, 4, 1
v_lshlrev_b32 v9, 15, v9
v_and_b32 v10, 15, v0
v_lshl_add_u32 v9, v10, 4, v9
v_lshrrev_b32 v10, 5, v0
v_lshl_add_u32 v9, v10, 8, v9""")
    for i in range(8): a(f"v_pk_mul_f32 {vr(O+2*i,2)}, {vr(O+2*i,2)}, v[8:9] op_sel_hi:[1,0]")
    for i in range(8): a(cv(P+i,O+2*i))
    a(f"""buffer_store_dwordx4 {vr(P,4)}, v9, s[16:19], s24 offen
buffer_store_dwordx4 {vr(P+4,4)}, v9, s[16:19], s24 offen offset:512
s_nop 0""")
    stamp(a,4)
    a(f"""s_mov_b64 exec, -1
s_lshr_b32 s24, s10, 2
s_lshl_b32 s24, s24, 12
s_lshl_b32 s25, s9, 7
s_add_u32 s24, s24, s25
s_add_u32 s42, s24, {FL2}""")
    stamp_out(a,2,5)
    finish(a)
    return a.txt()

def wo(name):
    a=A(); a(f'{name}:'); stamp(a,-1); stamp(a,0)
    ACC=16; WF=32; XR=64; AR=72; NB=12; P=32
    a(f"""s_and_b32 s24, s2, 7
s_mov_b32 s8, s62
s_lshr_b32 s25, s2, 3
s_and_b32 s26, s24, 3
s_lshl_b32 s26, s26, 2
s_and_b32 s9, s25, 3
s_add_u32 s9, s9, s26
s_lshr_b32 s26, s24, 2
s_lshl_b32 s26, s26, 3
s_lshr_b32 s10, s25, 2
s_add_u32 s10, s10, s26
s_lshl_b32 s27, s9, 3
s_add_u32 s27, s27, s8
v_and_b32 v1, 15, v0
v_lshrrev_b32 v2, 4, v0
v_lshlrev_b32 v3, 4, v0
v_add_u32 v4, 0x10000, v3
v_lshlrev_b32 v5, 11, v1
v_lshl_add_u32 v5, v2, 3, v5
s_lshl_b32 s20, s27, 15
s_lshl_b32 s44, s8, 12
s_add_u32 s44, s44, 0x18000
s_lshl_b32 s21, s10, 17
s_add_u32 s21, s21, s44
s_lshl_b32 s22, s10, 7
s_add_u32 s22, s22, s20""")
    srd(a,12,4,WS_O,4*MB); srd(a,16,4,WS_WO,2*MB); srd(a,28,P_X,0,S*D*2)
    for i in range(16): a(f"v_mov_b32 v{ACC+i}, 0")
    a("s_waitcnt vmcnt(0)")
    mid=["s_mov_b32 m0, s44",f"s_mov_b32 s25, {FLW}"]+[f"buffer_load_dwordx4 v3, s[16:19], s21 offen offset:{i*1024} lds" for i in range(4)]
    mid+=["v_mov_b32 v240, v3","buffer_load_dwordx4 v[244:247], v3, s[36:39], s25 offen"]
    mid+=[f"buffer_load_dwordx2 {vr(XR+2*f,2)}, v5, s[28:31], s22 offen offset:{f*32}" for f in range(4)]
    stamp(a,1)
    a(f"s_lshr_b32 s24, s9, 1\ns_lshl_b32 s24, s24, 12\ns_add_u32 s24, s24, {FL2}"); handoff(a,24,32,8,mid)
    stamp(a,2)
    def ld(ks):
        r=[f"buffer_load_dwordx4 {vr(AR+4*(ks%NB),4)}, v3, s[12:15], s20 offen offset:{(ks%4)*1024}"]
        if ks%4==3: r.append("s_add_u32 s20, s20, 4096")
        return r
    rdw=lambda ks: [f"ds_read_b128 {vr(WF+16*(ks&1)+4*f,4)}, v{3 if ks<16 else 4} offset:{((ks%16)*4+f)*1024}" for f in range(4)]
    for ks in range(NB-1): a.ext(ld(ks))
    a.ext(rdw(0))
    for ks in range(32):
        if ks==12: a("s_barrier")
        nl=min(NB-2,31-ks)
        a(f"s_waitcnt vmcnt({nl}) lgkmcnt(0)")
        m=[mf16(ACC+4*f,WF+16*(ks&1)+4*f,AR+4*(ks%NB)) for f in range(4)]
        a.ext(interleave(m,(rdw(ks+1) if ks<31 else []),per=2))
        if ks+NB-1<32: a.ext(ld(ks+NB-1))
    stamp(a,3)
    pollw(a,240)
    srd(a,28,4,WS_H,4*MB); srd(a,32,4,WS_ST,16*S*8)
    a(f"""s_lshl_b32 s24, s27, 15
s_lshl_b32 s25, s10, 11
s_add_u32 s24, s24, s25
s_lshl_b32 s25, s9, 11
s_lshl_b32 s26, s10, 7
s_add_u32 s25, s25, s26
s_add_u32 s42, s25, {FL3}
s_nop 1""")
    for i in range(8): a(f"v_lshlrev_b32 v12, 16, v{XR+i}\nv_and_b32 v13, 0xffff0000, v{XR+i}\nv_pk_add_f32 {vr(ACC+2*i,2)}, {vr(ACC+2*i,2)}, v[12:13]")
    for fp in range(2):
        for i in range(4): a(f"v_cvt_pk_bf16_f32 v{P+4*fp+i}, v{ACC+8*fp+2*i}, v{ACC+8*fp+2*i+1}")
        a(f"buffer_store_dwordx4 {vr(P+4*fp,4)}, v3, s[28:31], s24 offen offset:{fp*1024}")
    a("v_mov_b32 v8, 0\nv_mov_b32 v9, 0\nv_mov_b32 v10, 0\nv_mov_b32 v11, 0")
    for i in range(8):
        a(f"v_lshlrev_b32 v12, 16, v{P+i}\nv_and_b32 v13, 0xffff0000, v{P+i}\nv_pk_add_f32 v[8:9], v[8:9], v[12:13]\nv_pk_fma_f32 v[10:11], v[12:13], v[12:13], v[10:11]")
    a("v_add_f32 v8, v8, v9\nv_add_f32 v9, v10, v11")
    xreduce(a,[8,9],[10,11])
    a(f"""s_lshl_b32 s24, s27, 7
s_lshl_b32 s25, s10, 14
s_add_u32 s24, s24, s25
v_lshlrev_b32 v10, 3, v0
s_mov_b64 exec, 0xffff
buffer_store_dwordx2 v[8:9], v10, s[32:35], s24 offen
s_mov_b64 exec, -1""")
    stamp(a,4); stamp_out(a,3,5)
    finish(a)
    return a.txt()
```
